```python
import torch

def _softmax(x, axis=-1):
    return torch.softmax(x, dim=axis)
def _gelu(x):
    return torch.nn.functional.gelu(x, approximate="tanh")
def _silu(x):
    return torch.nn.functional.silu(x)
def _sigmoid(x):
    return torch.sigmoid(x)
def _layernorm(x, axis=-1, eps=1e-5):
    m = x.mean(dim=axis, keepdim=True)
    v = x.var(dim=axis, keepdim=True, unbiased=False)
    return (x - m) / torch.sqrt(v + eps)
def _scatter_add(tgt, idx, src, axis=0):
    return tgt.clone().index_add_(axis, idx, src)
def _segment_sum(src, seg, n):
    out = torch.zeros((n,) + src.shape[1:], dtype=src.dtype)
    return out.index_add_(0, seg, src)
def _pad(x, pw):
    flat = tuple(v for pair in reversed(pw) for v in pair)
    return torch.nn.functional.pad(x, flat)

kernel_name = 'interleave_layers__spectral_fnet__swiglu_ffn__prompt'

def setup_inputs():

    _w = (lambda a: (lambda t: t.to(torch.bfloat16) if t.is_floating_point() else t)(torch.as_tensor(a)))
    def _A_setup():
        B, S, D = 1, 2048, 448
        ns = torch.arange(S)[:, None] * torch.arange(S)[None, :]
        nd = torch.arange(D)[:, None] * torch.arange(D)[None, :]
        Ws_re = torch.cos(-2.0 * torch.pi * ns / S).to(float)
        Ws_im = torch.sin(-2.0 * torch.pi * ns / S).to(float)
        Wd_re = torch.cos(-2.0 * torch.pi * nd / D).to(float)
        Wd_im = torch.sin(-2.0 * torch.pi * nd / D).to(float)
        return {
            "x": _w((lambda *s: torch.randn(*s, dtype=torch.bfloat16) * 0.05)(B, S, D)),
            "dft_seq_re": _w(Ws_re),
            "dft_seq_im": _w(Ws_im),
            "dft_hid_re": _w(Wd_re),
            "dft_hid_im": _w(Wd_im),
        }
    _A_in = _A_setup()

    def _B_setup():
        B, S, D, F = 1, 2048, 448, 1792
        return {
            "x": _w((lambda *s: torch.randn(*s, dtype=torch.bfloat16) * 0.05)(B, S, D)),
            "w_gate": _w((lambda *s: torch.randn(*s, dtype=torch.bfloat16) * 0.4)(D, F)),
            "w_up": _w((lambda *s: torch.randn(*s, dtype=torch.bfloat16) * 0.4)(D, F)),
            "w_down": _w((lambda *s: torch.randn(*s, dtype=torch.bfloat16) * 0.4)(F, D)),
        }
    _B_in = _B_setup()

    return {
        "A_x": _A_in["x"],
        "A_dft_seq_re": _A_in["dft_seq_re"],
        "A_dft_seq_im": _A_in["dft_seq_im"],
        "A_dft_hid_re": _A_in["dft_hid_re"],
        "A_dft_hid_im": _A_in["dft_hid_im"],
        "B_x": _B_in["x"],
        "B_w_gate": _B_in["w_gate"],
        "B_w_up": _B_in["w_up"],
        "B_w_down": _B_in["w_down"],
    }

def reference(A_x, A_dft_seq_re, A_dft_seq_im, A_dft_hid_re, A_dft_hid_im, B_x, B_w_gate, B_w_up, B_w_down):
    def _A_ref(x, dft_seq_re, dft_seq_im, dft_hid_re, dft_hid_im):
        a = torch.einsum("bsd,ed->bse", x, dft_hid_re)
        b = torch.einsum("bsd,ed->bse", x, dft_hid_im)
        y = torch.einsum("ts,bse->bte", dft_seq_re, a) - torch.einsum("ts,bse->bte", dft_seq_im, b)
        return y

    def _B_ref(x, w_gate, w_up, w_down):
        g = _silu(x @ w_gate)
        u = x @ w_up
        return (g * u) @ w_down

    x = A_x
    x = x + _A_ref(_layernorm(x, axis=-1), A_dft_seq_re, A_dft_seq_im, A_dft_hid_re, A_dft_hid_im)
    x = x + _B_ref(_layernorm(x, axis=-1), B_w_gate, B_w_up, B_w_down)
    x = x + _A_ref(_layernorm(x, axis=-1), A_dft_seq_re, A_dft_seq_im, A_dft_hid_re, A_dft_hid_im)
    x = x + _B_ref(_layernorm(x, axis=-1), B_w_gate, B_w_up, B_w_down)
    return x
```

```python
import re

TRANS = ('v_exp_f32', 'v_log_f32', 'v_rcp_f32', 'v_rsq_f32', 'v_sqrt_f32', 'v_sin_f32', 'v_cos_f32')
REG_RE = re.compile(r'^(-|\|)?(?:abs\()?([vas])(?:(\d+)|\[(\d+):(\d+)\])\)?\|?$')


def regs_of(tok):
    tok = tok.strip()
    if tok == 'vcc':
        return [('s', 'vcc')]
    if tok == 'exec':
        return [('s', 'exec')]
    if tok == 'm0':
        return [('s', 'm0')]
    m = REG_RE.match(tok)
    if not m:
        return []
    k = m.group(2)
    if m.group(3) is not None:
        return [(k, int(m.group(3)))]
    return [(k, i) for i in range(int(m.group(4)), int(m.group(5)) + 1)]


def split_ops(s):
    ops, depth, cur = [], 0, ''
    for ch in s:
        if ch in '[(':
            depth += 1
        if ch in '])':
            depth -= 1
        if ch == ',' and depth == 0:
            ops.append(cur.strip())
            cur = ''
        else:
            cur += ch
    if cur.strip():
        ops.append(cur.strip())
    mods = []
    if ops:
        parts = []
        depth = 0
        cur = ''
        for ch in ops[-1]:
            if ch in '[(':
                depth += 1
            if ch in '])':
                depth -= 1
            if ch == ' ' and depth == 0:
                if cur:
                    parts.append(cur)
                cur = ''
            else:
                cur += ch
        if cur:
            parts.append(cur)
        ops[-1] = parts[0]
        mods = parts[1:]
    return ops, mods


class Ins:
    __slots__ = ('text', 'mn', 'kind', 'dst', 'src', 'srcC', 'srcAB', 'lds_dma', 'wide_store', 'tag', 'data')

    def __init__(self, text, tag=None):
        self.text = text
        self.tag = tag
        sp = text.split(None, 1)
        mn = sp[0]
        self.mn = mn
        ops, mods = split_ops(sp[1]) if len(sp) > 1 else ([], [])
        R = [regs_of(o) for o in ops]
        flat = lambda L: [r for x in L for r in x]
        self.srcC = []
        self.srcAB = []
        self.lds_dma = False
        self.wide_store = False
        self.data = []
        if mn.startswith('v_mfma'):
            self.kind = 'mfma'
            self.dst = R[0]
            self.srcAB = R[1] + R[2]
            self.srcC = R[3]
            self.src = self.srcAB + self.srcC
        elif mn.startswith('v_'):
            self.kind = 'valu'
            self.dst = R[0]
            self.src = flat(R[1:])
            if mn.startswith(('v_fmac', 'v_dot2c', 'v_pk_fmac')):
                self.src += R[0]
            if mn.startswith('v_permlane') and 'swap' in mn:
                self.dst = R[0] + R[1]
                self.src = R[0] + R[1]
            if mn.startswith(('v_add_co', 'v_sub_co', 'v_addc_co', 'v_subb_co')):
                self.dst = R[0] + R[1]
                self.src = flat(R[2:])
            if mn.startswith('v_writelane'):
                self.src += R[0]
        elif mn.startswith(('buffer_load', 'global_load')):
            self.kind = 'vmem'
            if 'lds' in mods or 'load_lds' in mn:
                self.lds_dma = True
                self.dst = []
                self.src = flat(R) + [('s', 'm0')]
            else:
                self.dst = R[0]
                self.src = flat(R[1:])
                if 'd16' in mn:
                    self.src += R[0]
        elif mn.startswith('buffer_store'):
            self.kind = 'vmem'
            self.dst = []
            self.src = flat(R)
            self.data = R[0]
            self.wide_store = mn.endswith(('x3', 'x4'))
        elif mn.startswith('global_store'):
            self.kind = 'vmem'
            self.dst = []
            self.src = flat(R)
            self.data = R[1]
            self.wide_store = mn.endswith(('x3', 'x4'))
        elif mn.startswith(('buffer_atomic', 'global_atomic')):
            self.kind = 'vmem'
            self.src = flat(R)
            self.dst = R[0] if 'sc0' in mods else []
        elif mn.startswith('ds_read') or mn.startswith('ds_bpermute') or mn.startswith('ds_swizzle'):
            self.kind = 'ds'
            self.dst = R[0]
            self.src = flat(R[1:])
        elif mn.startswith('ds_'):
            self.kind = 'ds'
            self.dst = []
            self.src = flat(R)
        elif mn.startswith(('s_load', 's_memtime', 's_memrealtime', 's_buffer_load')):
            self.kind = 'smem'
            self.dst = R[0]
            self.src = flat(R[1:])
        elif mn.startswith('s_'):
            self.kind = 'salu'
            if mn.startswith(('s_cmp', 's_cbranch', 's_branch', 's_barrier', 's_waitcnt', 's_nop', 's_sleep',
                              's_setprio', 's_endpgm', 's_setpc', 's_bitcmp')):
                self.dst = []
                self.src = flat(R)
            else:
                self.dst = R[0]
                self.src = flat(R[1:])
                if 'saveexec' in mn:
                    self.dst = R[0] + [('s', 'exec')]
        else:
            raise ValueError('unknown instruction ' + text)

    def passes(self):
        if '32x32x16' in self.mn:
            return 8
        if '16x16x32' in self.mn:
            return 4
        raise ValueError(self.mn)


class Asm:
    def __init__(self):
        self.items = []

    def __call__(self, text, tag=None):
        for line in text.split('\n'):
            line = line.split(';')[0].strip()
            if not line:
                continue
            if line.endswith(':'):
                self.items.append(('label', line[:-1]))
            elif line.startswith('.'):
                self.items.append(('raw', line))
            else:
                self.items.append(Ins(line, tag))

    def label(self, name):
        self.items.append(('label', name))

    def comment(self, c):
        self.items.append(('raw', '; ' + c))

    def raw(self, t):
        self.items.append(('raw', t))

    def wait_vm(self, tag):
        self.items.append(('waitvm', tag))

    def wait_ds(self, tag):
        self.items.append(('waitds', tag))

    def fence(self):
        self('s_waitcnt vmcnt(0) lgkmcnt(0)')
        self('s_nop 15')

    def extend(self, items):
        self.items.extend(items)

    def finalize(self, verbose=False):
        out = []
        pos = 0
        last_valu_w = {}
        last_trans_w = {}
        last_mfma_w = {}
        last_mfma_c = {}
        last_salu_m0 = -100
        last_wstore = {}
        vmq = []
        dsq = []
        smem_pending = set()
        nops = 0
        stats = dict(nops=0, waits=0, n=0)

        def emit(text):
            out.append('  ' + text)

        def do_wait(vm=None, lg=None):
            nonlocal pos
            parts = []
            if vm is not None:
                vm = min(vm, 63)
                parts.append(f'vmcnt({vm})')
                del vmq[:max(0, len(vmq) - vm)]
            if lg is not None:
                lg = min(lg, 15)
                parts.append(f'lgkmcnt({lg})')
                del dsq[:max(0, len(dsq) - lg)]
                if lg == 0:
                    smem_pending.clear()
            emit('s_waitcnt ' + ' '.join(parts))
            pos += 1
            stats['waits'] += 1

        for it in self.items:
            if isinstance(it, tuple):
                if it[0] == 'label':
                    out.append(it[1] + ':')
                elif it[0] == 'raw':
                    out.append(it[1])
                elif it[0] == 'waitvm':
                    idx = [i for i, o in enumerate(vmq) if o['tag'] == it[1]]
                    if idx:
                        do_wait(vm=len(vmq) - 1 - idx[-1])
                elif it[0] == 'waitds':
                    idx = [i for i, o in enumerate(dsq) if o['tag'] == it[1]]
                    if idx:
                        do_wait(lg=0 if smem_pending else len(dsq) - 1 - idx[-1])
                continue
            I = it
            stats['n'] += 1
            if I.mn == 's_waitcnt':
                m = re.search(r'vmcnt\((\d+)\)', I.text)
                if m:
                    del vmq[:max(0, len(vmq) - int(m.group(1)))]
                m = re.search(r'lgkmcnt\((\d+)\)', I.text)
                if m:
                    n = int(m.group(1))
                    if n == 0:
                        smem_pending.clear()
                        dsq.clear()
                    elif not smem_pending:
                        del dsq[:max(0, len(dsq) - n)]
                emit(I.text)
                pos += 1
                continue
            if I.mn == 's_nop':
                emit(I.text)
                pos += int(I.text.split()[1]) + 1
                continue
            touched = set(I.src) | set(I.dst)
            vm = lg = None
            for i in range(len(vmq) - 1, -1, -1):
                if vmq[i]['dst'] & touched:
                    vm = len(vmq) - 1 - i
                    break
            for i in range(len(dsq) - 1, -1, -1):
                if dsq[i]['dst'] & touched:
                    lg = len(dsq) - 1 - i
                    break
            if smem_pending & touched or (lg is not None and smem_pending):
                lg = 0
            if vm is not None or lg is not None:
                do_wait(vm, lg)
            need = 0

            def req(p, n):
                nonlocal need
                need = max(need, n - (pos - p - 1))

            if I.kind == 'mfma':
                for r in I.src:
                    if r in last_valu_w:
                        req(last_valu_w[r], 2)
                for r in I.srcAB:
                    if r in last_mfma_w:
                        p, ps, _ = last_mfma_w[r]
                        req(p, {4: 8, 8: 12}[ps])
                for r in list(I.srcC) + list(I.dst):
                    if r in last_mfma_w:
                        p, ps, d = last_mfma_w[r]
                        if d == tuple(I.srcC) and ps == I.passes():
                            continue
                        req(p, {4: 6, 8: 10}[ps])
            else:
                if I.kind in ('valu', 'vmem', 'ds'):
                    for r in touched:
                        if r in last_mfma_w:
                            p, ps, _ = last_mfma_w[r]
                            req(p, {4: 8, 8: 12}[ps])
                if I.kind == 'valu':
                    for r in I.dst:
                        if r in last_mfma_c:
                            p, ps = last_mfma_c[r]
                            req(p, {4: 3, 8: 7}[ps])
                        if r in last_wstore:
                            req(last_wstore[r], 2)
                    base = I.mn.replace('_e32', '').replace('_e64', '')
                    for r in I.src:
                        if r[0] == 's' and r in last_valu_w:
                            req(last_valu_w[r], 4 if I.mn.startswith(('v_readlane', 'v_writelane')) else 2)
                        if r[0] != 's' and r in last_valu_w:
                            if I.mn.startswith(('v_readfirstlane', 'v_readlane')):
                                req(last_valu_w[r], 1)
                            if I.mn.startswith('v_permlane') or 'dpp' in I.mn:
                                req(last_valu_w[r], 2)
                        if r in last_trans_w and base not in TRANS:
                            req(last_trans_w[r], 1)
                if I.kind in ('vmem', 'ds'):
                    for r in I.dst:
                        if r in last_wstore:
                            req(last_wstore[r], 1)
                if I.kind == 'vmem':
                    for r in I.src:
                        if r[0] == 's' and r in last_valu_w:
                            req(last_valu_w[r], 5)
                    if I.lds_dma:
                        req(last_salu_m0, 1)
                if I.mn.startswith('s_cbranch_vcc') and ('s', 'vcc') in last_valu_w:
                    req(last_valu_w[('s', 'vcc')], 5)
            while need > 0:
                n = min(need, 16)
                emit(f's_nop {n - 1}')
                pos += n
                need -= n
                stats['nops'] += n
            emit(I.text)
            for r in I.dst:
                last_valu_w.pop(r, None)
                last_trans_w.pop(r, None)
                if I.kind != 'mfma':
                    last_mfma_w.pop(r, None)
            if I.kind == 'valu':
                base = I.mn.replace('_e32', '').replace('_e64', '')
                for r in I.dst:
                    last_valu_w[r] = pos
                    if base in TRANS:
                        last_trans_w[r] = pos
            elif I.kind == 'mfma':
                d = tuple(I.dst)
                for r in I.dst:
                    last_mfma_w[r] = (pos, I.passes(), d)
                for r in I.srcC:
                    last_mfma_c[r] = (pos, I.passes())
            elif I.kind == 'salu':
                if ('s', 'm0') in I.dst:
                    last_salu_m0 = pos
            elif I.kind == 'vmem':
                vmq.append(dict(dst=set(I.dst), tag=I.tag))
                if I.wide_store:
                    for r in I.data:
                        last_wstore[r] = pos
            elif I.kind == 'ds':
                dsq.append(dict(dst=set(I.dst), tag=I.tag))
            elif I.kind == 'smem':
                smem_pending |= set(I.dst)
            pos += 1
        if verbose:
            print('asm stats', stats)
        return '\n'.join(out) + '\n'


def kernel_file(body, name, launch_line, header_comments='', vgpr=512, accum=256, sgpr=102):
    s = header_comments
    s += launch_line + '\n'
    s += '.amdgcn_target "amdgcn-amd-amdhsa--gfx950"\n.text\n'
    s += f'.globl {name}\n.p2align 8\n.type {name},@function\n{name}:\n'
    s += body
    s += '.section .rodata,"a"\n.p2align 6\n'
    s += f'.amdhsa_kernel {name}\n'
    s += f'  .amdhsa_next_free_vgpr {vgpr}\n  .amdhsa_next_free_sgpr {sgpr}\n  .amdhsa_accum_offset {accum}\n'
    s += '  .amdhsa_group_segment_fixed_size 0\n  .amdhsa_kernarg_size 96\n  .amdhsa_user_sgpr_count 2\n'
    s += '  .amdhsa_user_sgpr_kernarg_segment_ptr 1\n  .amdhsa_system_sgpr_workgroup_id_x 1\n.end_amdhsa_kernel\n'
    return s
```

```python
import sys
from asmgen import Asm, kernel_file

NAME = 'interleave_layers__spectral_fnet__swiglu_ffn__prompt_kernel'
NWG = 224
LSTRIDE = 0xE00000
FA, FB, FC = 0x0, 0x20000, 0x40000
STATOFF = 0xC0000
XOFF = 0x100000
STOFF = 0x2C0000
T1OFF = 0x480000
HOFF = 0x640000
WDOFF = 2 * LSTRIDE
STAMPOFF = WDOFF + 0x200000
WS, SX, SW, SWD, SOUT, SHID, SRE, SIM = ('s[4:7]', 's[8:11]', 's[12:15]', 's[16:19]', 's[20:23]', 's[24:27]',
                                         's[28:31]', 's[32:35]')
DBG = 's[36:37]'
NONCE = 's[38:39]'
sW, sCG, sG, sS2, sS2P, sJ, sT1, sT1E, sMIR, sKAP, sRT, sSPIN = ['s%d' % i for i in range(64, 76)]
MASK0 = 's[76:77]'
MASKLO = 's[78:79]'
sSELLO, sSELHI, sHIMASK, sE, sSGN, sW1K, sT1B = ['s%d' % i for i in range(80, 87)]
sA, sB, sC, sD = 's40', 's41', 's42', 's43'
vWD, vWM, vWM0 = 'v240', 'v241', 'v242'
vTR = 243
vX0 = 'v249'
vNON = 'v[250:251]'
vTMP = 'v252'
vSTAMP = 'v253'
vLANE = 'v254'
vL16 = 'v255'
X1LDS = 36 * 4096
SPIN_LIMIT = 300000


def vr(b, n=4):
    return f'v[{b}:{b + n - 1}]'


def ar(b, n=4):
    return f'a[{b}:{b + n - 1}]'


class Gen:
    def __init__(self, stop=None, stamps=False):
        self.a = Asm()
        self.stop = stop
        self.stamps = stamps
        self.nstamp = 0
        self.nlab = 0

    def lab(self, p='L'):
        self.nlab += 1
        return f'{p}_{self.nlab}'

    def stamp(self, name):
        if not self.stamps:
            return
        a = self.a
        a('s_memtime s[90:91]')
        a('s_waitcnt lgkmcnt(0)')
        a(f'v_writelane_b32 {vSTAMP}, s90, {self.nstamp}')
        self.stamp_names.append(name)
        self.nstamp += 1

    def srd(self, reg, lo, nbytes):
        b = int(reg[2:].split(':')[0])
        a = self.a
        a(f's_mov_b32 s{b}, s{lo}')
        a(f's_mov_b32 s{b + 1}, s{lo + 1}')
        a(f's_mov_b32 s{b + 2}, {nbytes}')
        a(f's_mov_b32 s{b + 3}, 0x20000')

    def flag_store(self, soff):
        return [f's_mov_b64 exec, 1\nbuffer_store_dwordx2 {vNON}, {vL16}, {WS}, {soff} offen sc1\ns_mov_b64 exec, -1']

    def poll(self, voff, soff, t):
        a = self.a
        L = self.lab('POLL')
        a.label(L)
        a(f'buffer_load_dwordx2 v[{t}:{t + 1}], {voff}, {WS}, {soff} offen sc1')
        a(f's_add_u32 {sSPIN}, {sSPIN}, 1')
        a(f's_cmp_gt_u32 {sSPIN}, {SPIN_LIMIT}')
        a('s_cbranch_scc1 L_end')
        a('s_waitcnt vmcnt(0)')
        a(f'v_cmp_ne_u64 vcc, v[{t}:{t + 1}], {NONCE}')
        a(f's_cbranch_vccnz {L}')

    def init(self):
        a = self.a
        a(f's_cmp_ge_u32 s2, {NWG}')
        a('s_cbranch_scc1 L_exit')
        a('s_load_dwordx16 s[40:55], s[0:1], 0')
        a('s_load_dwordx8 s[56:63], s[0:1], 64')
        a('s_memrealtime s[38:39]')
        a('v_lshrrev_b32 v1, 6, v0')
        a(f'v_and_b32 {vLANE}, 63, v0')
        a(f'v_readfirstlane_b32 {sW}, v1')
        a(f'v_lshlrev_b32 {vL16}, 4, {vLANE}')
        if self.stamps:
            a(f'v_mov_b32 {vSTAMP}, 0')
        a(f's_mov_b32 {sSPIN}, 0')
        a('s_and_b32 s88, s2, 7')
        a('s_lshr_b32 s89, s2, 3')
        a('s_mul_i32 s92, s89, 37')
        a('s_lshr_b32 s92, s92, 8')
        a('s_mul_i32 s93, s92, 7')
        a(f's_sub_u32 {sCG}, s89, s93')
        a('s_lshr_b32 s93, s88, 1')
        a('s_lshl_b32 s93, s93, 2')
        a(f's_add_u32 {sG}, s93, s92')
        a('s_and_b32 s88, s88, 1')
        a(f's_sub_u32 s93, 32, {sG}')
        a(f's_cmp_eq_u32 {sG}, 0')
        a('s_cselect_b32 s93, 16, s93')
        a('s_cmp_eq_u32 s88, 0')
        a(f's_cselect_b32 {sS2}, {sG}, s93')
        a(f's_cselect_b32 {sS2P}, s93, {sG}')
        a('s_mul_i32 s88, s88, 7')
        a(f's_add_u32 {sJ}, {sCG}, s88')
        a(f's_and_b32 {sRT}, {sW}, 1')
        a(f's_lshr_b32 {sKAP}, {sW}, 1')
        a(f's_lshl_b32 s88, {sRT}, 5')
        a(f's_add_u32 {sT1E}, {sS2}, s88')
        a(f's_add_u32 s89, {sS2P}, s88')
        a(f's_cmp_eq_u32 {sKAP}, 0')
        a(f's_cselect_b32 {sT1}, {sT1E}, s89')
        a(f's_sub_u32 s88, 64, {sT1}')
        a('s_and_b32 s88, s88, 63')
        a(f's_lshr_b32 {sMIR}, s88, 5')
        a('s_and_b32 s88, s88, 31')
        a(f's_cmp_eq_u32 s88, {sS2}')
        a('s_cselect_b32 s88, 0, 2')
        a(f's_add_u32 {sMIR}, {sMIR}, s88')
        a(f's_or_b32 s88, {sCG}, {sKAP}')
        a('s_cmp_eq_u32 s88, 0')
        a('s_cselect_b32 s76, -1, 0')
        a('s_mov_b32 s77, 0')
        a('s_mov_b32 s78, -1')
        a('s_mov_b32 s79, 0')
        a(f's_mov_b32 {sSELLO}, 0x05040100')
        a(f's_mov_b32 {sSELHI}, 0x07060302')
        a(f's_mov_b32 {sHIMASK}, 0xffff0000')
        a(f's_cmp_eq_u32 {sRT}, 0')
        a(f's_cselect_b32 {sSGN}, 0x80008000, 0')
        a(f's_lshl_b32 {sW1K}, {sW}, 10')
        a(f's_lshl_b32 s88, {sCG}, 1')
        a(f's_add_u32 s88, s88, {sKAP}')
        a(f's_mul_i32 {sE}, {sT1E}, 28')
        a(f's_add_u32 {sE}, {sE}, s88')
        a(f's_lshl_b32 {sE}, {sE}, 10')
        a('s_waitcnt lgkmcnt(0)')
        self.srd(WS, 62, 0x10000000)
        self.srd(SX, 40, 1835008)
        self.srd(SWD, 56, 1605632)
        self.srd(SOUT, 58, 1835008)
        self.srd(SRE, 42, 8388608)
        self.srd(SIM, 44, 8388608)
        a(f's_cmp_eq_u32 {sKAP}, 0')
        a('s_cselect_b32 s12, s52, s54')
        a('s_cselect_b32 s13, s53, s55')
        a('s_mov_b32 s14, 1605632')
        a('s_mov_b32 s15, 0x20000')
        a('s_cselect_b32 s24, s46, s48')
        a('s_cselect_b32 s25, s47, s49')
        a('s_mov_b32 s26, 401408')
        a('s_mov_b32 s27, 0x20000')
        a('s_mov_b32 s36, s60')
        a('s_mov_b32 s37, s61')
        a(f's_or_b32 s88, s2, {sW}')
        a('s_cmp_lg_u32 s88, 0')
        a('s_cbranch_scc1 L_nopub')
        a('s_or_b32 s38, s38, 1')
        a('v_mov_b32 v250, s38')
        a('v_mov_b32 v251, s39')
        a('s_mov_b64 exec, 1')
        a(f'global_store_dwordx2 {vL16}, {vNON}, {DBG} sc1')
        a('s_mov_b64 exec, -1')
        a.label('L_nopub')

    def row_offsets(self, vD, vM, vB):
        a = self.a
        a(f'v_and_b32 {vD}, 31, {vLANE}')
        a(f'v_lshlrev_b32 {vD}, 6, {vD}')
        a(f'v_add_u32 {vD}, {sT1E}, {vD}')
        a(f'v_mul_u32_u24 {vD}, 896, {vD}')
        a(f'v_lshrrev_b32 {vM}, 5, {vLANE}')
        a(f'v_lshlrev_b32 {vM}, 5, {vM}')
        a(f's_lshl_b32 {sA}, {sCG}, 6')
        a(f's_lshl_b32 {sB}, {sKAP}, 4')
        a(f's_add_u32 {sA}, {sA}, {sB}')
        a(f'v_add_u32 {vM}, {sA}, {vM}')
        a(f'v_sub_u32 {vB}, {vD}, {vM}')
        a(f'v_add_u32 {vD}, {vD}, {vM}')
        a(f'v_add_u32 {vM}, 880, {vB}')
        a(f'v_add_u32 {vB}, 448, {vB}')
        a(f'v_add_u32 {vTMP}, 448, {vB}')
        a(f'v_cndmask_b32_e64 {vB}, {vTMP}, {vB}, {MASK0}')

    def p0(self):
        a = self.a
        self.row_offsets('v1', 'v2', 'v3')
        a(f'buffer_load_dwordx4 v[4:7], v1, {SX}, 0 offen')
        a(f'buffer_load_dwordx4 v[8:11], v2, {SX}, 0 offen')
        a(f'buffer_load_ushort v12, v3, {SX}, 0 offen')
        a('v_min_u32 v20, 223, v0')
        a('v_lshlrev_b32 v21, 2, v20')
        a(f's_mul_i32 {sA}, s2, {8 * 896}')
        a(f's_add_u32 {sB}, {sA}, 3584')
        for r in range(8):
            a(f'buffer_load_dword v{24 + r}, v21, {SWD}, {sA if r < 4 else sB} offen offset:{(r & 3) * 896}')
        a('v_mov_b32 v13, 0')
        L = self.lab('NP')
        a.label(L)
        a(f'global_load_dwordx2 {vNON}, v13, {DBG} sc1')
        a(f's_add_u32 {sSPIN}, {sSPIN}, 1')
        a(f's_cmp_gt_u32 {sSPIN}, {SPIN_LIMIT}')
        a('s_cbranch_scc1 L_end')
        a('s_waitcnt vmcnt(0)')
        a('v_cmp_eq_u32 vcc, 0, v250')
        a(f's_cbranch_vccnz {L}')
        a('v_readfirstlane_b32 s38, v250')
        a('v_readfirstlane_b32 s39, v251')
        D, M = 200, 208
        for i in range(4):
            a(f'v_lshlrev_b32 v{D + 2 * i}, 16, v{4 + i}')
            a(f'v_and_b32 v{D + 2 * i + 1}, {sHIMASK}, v{4 + i}')
        a(f'v_lshlrev_b32 v{M}, 16, v12')
        for j in range(1, 8):
            e = 8 - j
            if e & 1:
                a(f'v_and_b32 v{M + j}, {sHIMASK}, v{8 + (e >> 1)}')
            else:
                a(f'v_lshlrev_b32 v{M + j}, 16, v{8 + (e >> 1)}')

    def wd_prep(self):
        a = self.a
        for m in range(4):
            a(f'v_perm_b32 v{32 + m}, v{25 + 2 * m}, v{24 + 2 * m}, {sSELLO}')
            a(f'v_perm_b32 v{36 + m}, v{25 + 2 * m}, v{24 + 2 * m}, {sSELHI}')
        a(f's_lshr_b32 {sA}, s2, 1')
        a(f's_lshl_b32 {sA}, {sA}, 11')
        a(f's_and_b32 {sB}, s2, 1')
        a(f's_lshl_b32 {sB}, {sB}, 9')
        a(f's_add_u32 {sA}, {sA}, {sB}')
        a(f's_add_u32 {sA}, {sA}, {WDOFF}')
        a(f's_movk_i32 {sB}, 224')
        a(f's_mov_b32 {sC}, {112 * 2048}')
        for h in range(2):
            a(f'v_lshlrev_b32 v40, 1, v20')
            if h:
                a('v_add_u32 v40, 1, v40')
            a('v_sub_u32 v41, 448, v40')
            a(f'v_cmp_eq_u32 vcc, {sB}, v40')
            a('v_cndmask_b32_e64 v41, v41, 0, vcc')
            a(f'v_cmp_gt_u32 vcc, {sB}, v40')
            a('v_cndmask_b32 v41, v41, v40, vcc')
            a('v_mov_b32 v42, 1024')
            a('v_cndmask_b32_e64 v42, v42, 0, vcc')
            a('v_lshrrev_b32 v43, 5, v41')
            a(f'v_mul_lo_u32 v43, v43, {sC}')
            a('v_add_u32 v42, v42, v43')
            a('v_and_b32 v43, 3, v41')
            a('v_bfe_u32 v44, v41, 2, 2')
            a('v_lshl_add_u32 v43, v44, 3, v43')
            a('v_bfe_u32 v44, v41, 4, 1')
            a('v_lshl_add_u32 v43, v44, 2, v43')
            a('v_lshl_add_u32 v42, v43, 4, v42')
            a(f'buffer_store_dwordx4 {vr(32 + 4 * h)}, v42, {WS}, {sA} offen sc1')

    def estage(self, L, D, M, T):
        a = self.a
        LB = L * LSTRIDE
        S_, T_, P = T, T + 8, T + 16
        for j in range(8):
            a(f'v_add_f32 v{S_ + j}, v{D + j}, v{M + j}')
            a(f'v_sub_f32 v{T_ + j}, v{D + j}, v{M + j}')
        q = T + 32
        a(f'v_add_f32 v{q}, v{S_}, v{S_ + 1}')
        a(f'v_cndmask_b32_e64 v{S_}, v{S_}, v{D}, {MASK0}')
        a(f'v_cndmask_b32_e64 v{T_}, v{T_}, v{M}, {MASK0}')
        for i in range(4):
            a(f'v_cvt_pk_bf16_f32 v{P + i}, v{S_ + 2 * i}, v{S_ + 2 * i + 1}')
        a(f's_add_u32 {sA}, {sE}, {LB + STOFF}')
        a(f'buffer_store_dwordx4 {vr(P)}, {vL16}, {WS}, {sA} offen sc1')
        for i in range(4):
            a(f'v_cvt_pk_bf16_f32 v{P + 4 + i}, v{T_ + 2 * i}, v{T_ + 2 * i + 1}')
        a(f's_add_u32 {sB}, {sE}, {LB + STOFF + 14336}')
        a(f'buffer_store_dwordx4 {vr(P + 4)}, {vL16}, {WS}, {sB} offen sc1')
        a(f'v_mul_f32 v{q + 1}, v{D}, v{D}')
        a(f'v_mul_f32 v{q + 2}, v{M}, v{M}')
        for j in range(1, 8):
            if j >= 2:
                a(f'v_add_f32 v{q}, v{q}, v{S_ + j}')
            a(f'v_fmac_f32 v{q + 1}, v{D + j}, v{D + j}')
            a(f'v_fmac_f32 v{q + 2}, v{M + j}, v{M + j}')
        a(f'v_add_f32 v{q + 1}, v{q + 1}, v{q + 2}')
        a(f'v_lshlrev_b32 v{q + 2}, 2, {vLANE}')
        a(f's_lshl_b32 {sC}, {sCG}, 1')
        a(f's_add_u32 {sC}, {sC}, {sKAP}')
        a(f's_lshl_b32 {sD}, {sT1E}, 4')
        a(f's_add_u32 {sC}, {sC}, {sD}')
        a(f'v_permlane32_swap_b32 v{q}, v{q + 1}')
        a(f's_lshl_b32 {sD}, {sC}, 8')
        a(f's_add_u32 {sD}, {sD}, {LB + STATOFF}')
        a(f'v_add_f32 v{q}, v{q}, v{q + 1}')
        a(f'buffer_store_dword v{q}, v{q + 2}, {WS}, {sD} offen sc1')
        for i in range(4):
            a(f'v_cvt_pk_bf16_f32 v{P + 8 + i}, v{D + 2 * i}, v{D + 2 * i + 1}')
        a(f's_add_u32 {sA}, {sE}, {LB + XOFF}')
        a(f'buffer_store_dwordx4 {vr(P + 8)}, {vL16}, {WS}, {sA} offen sc1')
        for i in range(4):
            a(f'v_cvt_pk_bf16_f32 v{P + 12 + i}, v{M + 2 * i}, v{M + 2 * i + 1}')
        a(f's_add_u32 {sB}, {sE}, {LB + XOFF + 14336}')
        a(f'buffer_store_dwordx4 {vr(P + 12)}, {vL16}, {WS}, {sB} offen sc1', tag='est')
        a(f's_lshl_b32 {sC}, {sC}, 7')
        a(f's_add_u32 {sC}, {sC}, {LB + FA}')

    def p3_tables_issue(self):
        a = self.a
        a(f'v_and_b32 v56, 3, {vLANE}')
        a(f'v_bfe_u32 v57, {vLANE}, 3, 2')
        a('v_lshl_add_u32 v56, v57, 2, v56')
        a(f'v_bfe_u32 v57, {vLANE}, 2, 1')
        a('v_lshl_add_u32 v56, v57, 4, v56')
        a(f's_lshl_b32 {sA}, {sCG}, 5')
        a(f'v_add_u32 v56, {sA}, v56')
        a('v_mov_b32 v57, 224')
        a('v_cmp_eq_u32 vcc, 0, v56')
        a('v_cndmask_b32 v56, v56, v57, vcc')
        a('v_mul_u32_u24 v56, 896, v56')
        a(f'v_lshrrev_b32 v57, 5, {vLANE}')
        a('v_lshl_add_u32 v56, v57, 5, v56')
        for f in range(14):
            a(f'buffer_load_dwordx4 {vr(4 * f)}, v56, {SHID}, 0 offen offset:{64 * (f >> 1) + 16 * (f & 1)}')
        a(f'v_and_b32 v58, 31, {vLANE}')
        a('v_lshlrev_b32 v58, 17, v58')
        a('v_lshl_add_u32 v58, v57, 4, v58')
        a(f's_lshl_b32 {sA}, {sKAP}, 22')
        for tab in range(2):
            for kj in range(4):
                a(f'buffer_load_dwordx4 {vr(60 + 16 * tab + 4 * kj)}, v58, {SIM if tab else SRE}, {sA} offen offset:{32 * kj}')

    def p3_tables_fix(self):
        a = self.a
        for tab in range(2):
            for kap in range(2):
                for jq in range(2):
                    src = 60 + 16 * tab + 4 * (2 * kap + jq)
                    for rt in range(2):
                        for m in range(2):
                            dst = 92 + 16 * tab + 8 * rt + 4 * kap + 2 * jq + m
                            a(f'v_perm_b32 v{dst}, v{src + 2 * m + 1}, v{src + 2 * m}, {sSELHI if rt else sSELLO}')
        for i in range(16):
            a(f'v_xor_b32 v{108 + i}, {sSGN}, v{108 + i}')
        a(f'v_and_b32 v56, 1, {vLANE}')
        a('v_lshlrev_b32 v56, 15, v56')
        a('v_or_b32 v56, 0x3f80, v56')
        a(f's_cmp_eq_u32 {sKAP}, 0')
        a(f's_cselect_b32 s88, -1, 0')
        a('s_mov_b32 s89, 0')
        a('v_cndmask_b32_e64 v56, 0, v56, s[88:89]')
        a('v_mov_b32 v57, 0')
        a('v_mov_b32 v58, 0')
        a('v_mov_b32 v59, 0')

    def p3(self, L):
        a = self.a
        LB = L * LSTRIDE
        a(f'v_and_b32 v124, 15, {vLANE}')
        a('v_min_u32 v124, 13, v124')
        a(f'v_mov_b32 v125, {sT1E}')
        a(f'v_mov_b32 v126, {sT1}')
        a(f'v_and_b32 v127, 16, {vLANE}')
        a('v_cmp_eq_u32 vcc, 0, v127')
        a('v_cndmask_b32 v125, v126, v125, vcc')
        a('v_lshl_add_u32 v124, v125, 4, v124')
        a('v_lshlrev_b32 v124, 7, v124')
        a(f's_mov_b32 {sA}, {LB + FA}')
        self.p3_tables_fix()
        self.poll('v124', sA, 126)
        self.stamp(f'A{L}')
        a(f's_mul_i32 {sA}, {sT1E}, 28672')
        a(f's_add_u32 {sA}, {sA}, {LB + STOFF + 14336}')
        a(f's_lshl_b32 {sB}, {sT1E}, 12')
        a(f's_add_u32 {sB}, {sB}, {LB + STATOFF}')
        a(f'v_lshlrev_b32 v198, 2, {vLANE}')
        for f in range(14):
            a(f'buffer_load_dword v{184 + f}, v198, {WS}, {sB} offen offset:{256 * f} sc1')
        a(f'buffer_load_dwordx4 {vr(180)}, {vL16}, {WS}, {sA} offen sc1')
        a(f's_cmp_eq_u32 {sKAP}, 0')
        a(f's_cselect_b32 {sB}, 14336, 0')
        a(f's_sub_u32 {sA}, {sA}, {sB}')
        for f in range(14):
            if f and f % 4 == 0:
                a(f's_add_u32 {sA}, {sA}, 4096')
            a(f'buffer_load_dwordx4 {vr(124 + 4 * f)}, {vL16}, {WS}, {sA} offen offset:{1024 * (f & 3)} sc1')
        for st in (7,):
            for i in range(7):
                a(f'v_add_f32 v{184 + i}, v{184 + i}, v{191 + i}')
        a('v_add_f32 v184, v184, v185')
        a('v_add_f32 v186, v186, v187')
        a('v_add_f32 v188, v188, v189')
        a('v_add_f32 v184, v184, v186')
        a('v_add_f32 v188, v188, v190')
        a('v_add_f32 v184, v184, v188')
        a('v_mul_f32 v184, 0x3b124925, v184')
        a('v_mov_b32 v185, v184')
        a('v_permlane32_swap_b32 v184, v185')
        a('v_fma_f32 v185, -v184, v184, v185')
        a('v_max_f32 v185, 0, v185')
        a('v_add_f32 v185, 0x3727c5ac, v185')
        a('v_rsq_f32 v185, v185')
        RB = 8192
        a(f'v_and_b32 v186, 31, {vLANE}')
        a('v_lshlrev_b32 v186, 2, v186')
        a(f's_lshl_b32 {sA}, {sW}, 7')
        a(f'v_add_u32 v186, {sA}, v186')
        a(f'ds_write_b32 v186, v185 offset:{RB}')
        a(f'v_lshrrev_b32 v186, 5, {vLANE}')
        a('v_lshlrev_b32 v186, 4, v186')
        a(f'v_add_u32 v186, {sA}, v186')
        a('s_waitcnt lgkmcnt(0)')
        for q in range(4):
            a(f'ds_read_b128 {vr(216 + 4 * q)}, v186 offset:{RB + 32 * q}')
        a(f'v_mfma_f32_32x32x16_bf16 {vr(200, 16)}, {vr(180)}, {vr(56)}, 0')
        for f in range(14):
            a(f'v_mfma_f32_32x32x16_bf16 {vr(200, 16)}, {vr(124 + 4 * f)}, {vr(4 * f)}, {vr(200, 16)}')
        a(f's_lshl_b32 {sA}, {sRT}, 12')
        a(f's_lshl_b32 {sB}, {sKAP}, 11')
        a(f's_add_u32 {sA}, {sA}, {sB}')
        a(f'v_add_u32 v186, {sA}, {vL16}')
        a(f's_lshl_b32 {sA}, {sRT}, 11')
        a(f'v_add_u32 v187, {sA}, {vL16}')
        a(f's_xor_b32 {sA}, {sA}, 2048')
        a(f'v_add_u32 v188, {sA}, {vL16}')
        for i in range(16):
            a(f'v_mul_f32 v{200 + i}, v{200 + i}, v{216 + i}')
        for i in range(8):
            a(f'v_cvt_pk_bf16_f32 v{216 + i}, v{200 + 2 * i}, v{201 + 2 * i}')
        a(f'ds_write_b128 v186, {vr(216)}')
        a(f'ds_write_b128 v186, {vr(220)} offset:1024')
        a('s_waitcnt lgkmcnt(0)')
        a('s_barrier')
        for tab in range(2):
            for rt in range(2):
                for kap in range(2):
                    a(f'ds_read_b128 {vr(124 + 16 * tab + 8 * rt + 4 * kap)}, v{187 + tab} offset:{4096 * rt + 1024 * kap}')
        for i in range(8):
            c = '0' if i == 0 else vr(200, 16)
            a(f'v_mfma_f32_32x32x16_bf16 {vr(200, 16)}, {vr(124 + 4 * i)}, {vr(92 + 4 * i)}, {c}')
        a(f'v_and_b32 v186, 31, {vLANE}')
        a('v_lshlrev_b32 v186, 7, v186')
        a(f'v_lshrrev_b32 v187, 5, {vLANE}')
        a('v_lshl_add_u32 v186, v187, 5, v186')
        a(f's_mul_i32 {sC}, {sS2}, 7')
        a(f's_add_u32 {sC}, {sC}, {sCG}')
        a(f's_lshl_b32 {sA}, {sC}, 13')
        a(f's_lshl_b32 {sB}, {sKAP}, 12')
        a(f's_add_u32 {sA}, {sA}, {sB}')
        a(f's_lshl_b32 {sB}, {sRT}, 6')
        a(f's_add_u32 {sA}, {sA}, {sB}')
        a(f's_add_u32 {sA}, {sA}, {LB + T1OFF}')
        a(f's_lshl_b32 {sC}, {sC}, 7')
        a(f's_add_u32 {sC}, {sC}, {LB + FB}')
        for i in range(8):
            a(f'v_cvt_pk_bf16_f32 v{216 + i}, v{200 + 2 * i}, v{201 + 2 * i}')
        a(f'buffer_store_dwordx4 {vr(216)}, v186, {WS}, {sA} offen sc1')
        a(f'buffer_store_dwordx4 {vr(220)}, v186, {WS}, {sA} offen offset:16 sc1', tag='t1st')

    @staticmethod
    def slot(q):
        return 28 + q if q < 8 else (q - 8 if q < 36 else Gen.slot(q - 36))

    def w_dma(self, q):
        p, f = divmod(q, 28)
        ct, tk = divmod(f, 14)
        rowb = 32 * (tk >> 1) + 8 * (tk & 1)
        if ct == 0:
            v, so = vWD, rowb * 3584 + p * 128
        elif tk == 0:
            v, so = vWM0, p * 128
        else:
            v, so = vWM, (425 - rowb) * 3584 + p * 128
        return (f's_add_u32 m0, {sW1K}, {self.slot(q) * 4096}\ns_mov_b32 {sD}, {so}\n'
                f'buffer_load_dwordx4 {v}, {SW}, {sD} offen lds', f'w{q}')

    def setup_w_addr(self):
        a = self.a
        a(f'v_lshrrev_b32 v243, 3, {vLANE}')
        a(f'v_bfe_u32 v244, {vLANE}, 4, 1')
        a('v_lshlrev_b32 v244, 2, v244')
        a(f'v_and_b32 v245, 7, {vLANE}')
        a('v_xor_b32 v244, v244, v245')
        a('v_lshlrev_b32 v244, 4, v244')
        a(f's_lshl_b32 {sA}, {sJ}, 8')
        a(f'v_add_u32 v244, {sA}, v244')
        a(f's_lshl_b32 {sA}, {sRT}, 4')
        a(f'v_add_u32 v243, {sA}, v243')
        a('v_mul_u32_u24 v245, 3584, v243')
        a(f'v_add_u32 {vWD}, v245, v244')
        a(f'v_sub_u32 {vWM}, v244, v245')
        a(f'v_add_u32 {vWM0}, {448 * 3584}, {vWM}')
        a(f'v_add_u32 v245, {224 * 3584}, {vWM}')
        a('v_cmp_eq_u32 vcc, 0, v243')
        a(f'v_cndmask_b32 {vWM0}, {vWM0}, v245, vcc')
        a(f'v_add_u32 {vWM}, {23 * 3584}, {vWM}')

    def pre_b(self, L):
        a = self.a
        LB = L * LSTRIDE
        a(f'v_and_b32 v16, 31, {vLANE}')
        a('v_lshlrev_b32 v16, 18, v16')
        a(f'v_lshrrev_b32 v17, 5, {vLANE}')
        a('v_lshl_add_u32 v16, v17, 5, v16')
        a(f's_lshl_b32 {sA}, {sT1}, 12')
        for tab in range(2):
            for h in range(2):
                a(f'buffer_load_dwordx4 {vr(8 * tab + 4 * h)}, v16, {SIM if tab else SRE}, {sA} offen offset:{16 * h}')
        a.wait_vm('t1st')
        a('s_barrier')
        a(f's_lshl_b32 {sA}, {sW}, 15')
        a(f's_add_u32 {sC}, {sC}, {sA}')
        a(self.flag_store(sC)[0])
        a(f's_mul_i32 {sA}, {sT1}, 28672')
        a(f's_add_u32 {sA}, {sA}, {LB + XOFF}')
        for f in range(28):
            if f and f % 4 == 0:
                a(f's_add_u32 {sA}, {sA}, 4096')
            a(f'buffer_load_dwordx4 {vr(112 + 4 * f)}, {vL16}, {WS}, {sA} offen offset:{1024 * (f & 3)} sc1')
        if L == 0:
            self.setup_w_addr()
        for q in range(8):
            t, tag = self.w_dma(q)
            a(t, tag=tag)
        for e in range(16):
            a(f'v_perm_b32 v{224 + e}, v{8 + (e >> 1)}, v{e >> 1}, {sSELHI if e & 1 else sSELLO}')
        for e in range(16):
            a(f'v_xor_b32 v{224 + e}, 0x80000000, v{224 + e}')
        for r in range(112):
            a(f'v_lshlrev_b32 v{2 * r}, 16, v{112 + r}')
            a(f'v_and_b32 v{2 * r + 1}, {sHIMASK}, v{112 + r}')
        a(f'v_mov_b32 {vX0}, v0')
        a(f'v_lshrrev_b32 v243, 5, {vLANE}')
        a('v_lshlrev_b32 v243, 11, v243')
        a(f'v_bfe_u32 v244, {vLANE}, 2, 2')
        a('v_lshl_add_u32 v243, v244, 6, v243')
        a(f'v_and_b32 v244, 1, {vLANE}')
        a('v_lshl_add_u32 v243, v244, 5, v243')
        a(f'v_bfe_u32 v244, {vLANE}, 4, 1')
        a('v_lshl_add_u32 v243, v244, 4, v243')
        a(f'v_bfe_u32 v244, {vLANE}, 1, 1')
        a('v_lshl_add_u32 v243, v244, 3, v243')
        a(f's_mul_i32 {sA}, {sMIR}, 28672')
        a(f'v_add_u32 v244, {sA}, v243')
        a(f's_mul_i32 {sT1B}, {sW}, 28672')
        a(f'v_add_u32 v243, {sT1B}, v243')
        a(f'v_lshrrev_b32 v245, 3, {vLANE}')
        a('v_mul_u32_u24 v245, 57344, v245')
        a(f'v_and_b32 v246, 7, {vLANE}')
        a('v_lshl_add_u32 v245, v246, 4, v245')
        a(f's_lshl_b32 {sA}, {sW}, 6')
        a(f'v_add_u32 v246, {sA}, {vLANE}')
        a(f'v_min_u32 v246, {NWG - 1}, v246')
        a('v_lshlrev_b32 v246, 7, v246')

    def stage2(self, L):
        a = self.a
        LB = L * LSTRIDE
        a(f's_mov_b32 {sA}, {LB + FB}')
        self.poll('v246', sA, 248 - 0)
        a('s_barrier')
        self.stamp(f'B{L}')
        a(f's_lshl_b32 {sA}, {sT1}, 7')
        for cg in range(7):
            for i in range(4):
                a(f's_add_u32 m0, {sT1B}, {cg * 4096 + i * 1024}')
                a(f's_add_u32 {sB}, {sA}, {LB + T1OFF + cg * 8192 + i * 8 * 57344}')
                a(f'buffer_load_dwordx4 v245, {WS}, {sB} offen sc1 lds', tag=f't1_{cg}')
        ring = 224

        def reads(T):
            ct, tau = divmod(T, 7)
            b = ring + 16 * (T & 1)
            for k4 in range(4):
                for jq in range(2):
                    a(f'ds_read_b64_tr_b16 {ar(b + 4 * k4 + 2 * jq, 2)}, v{243 + ct} offset:{tau * 4096 + k4 * 512 + jq * 256}')

        def mm(T):
            b = ring + 16 * (T & 1)
            for k4 in range(4):
                a(f'v_mfma_f32_32x32x16_bf16 {vr(16 * T, 16)}, {ar(b + 4 * k4)}, {vr(224 + 4 * k4)}, {vr(16 * T, 16)}')

        a.wait_vm('t1_0')
        reads(0)
        for T in range(14):
            if T + 1 < 7:
                a.wait_vm(f't1_{T + 1}')
            if T + 1 == 7:
                a('s_barrier')
            if T + 1 < 14:
                reads(T + 1)
            if T == 7:
                for e in range(16):
                    a(f'v_xor_b32 v{224 + e}, 0x80000000, v{224 + e}')
            mm(T)
        a(f'v_cndmask_b32_e64 v0, v0, {vTMP}, {MASKLO}')
        a('s_barrier')

    def norm(self, L):
        a = self.a
        end = self.lab('X1E')
        a('s_nop 15')
        a(f's_cmp_lg_u32 {sKAP}, 0')
        a(f's_cbranch_scc1 {end}')
        a(f's_lshl_b32 {sA}, {sRT}, 13')
        a(f's_add_u32 {sA}, {sA}, {X1LDS}')
        a(f'v_add_u32 v224, {sA}, {vL16}')
        labs = [self.lab('X1') for _ in range(7)]
        for t in range(1, 7):
            a(f's_cmp_eq_u32 {sCG}, {t}')
            a(f's_cbranch_scc1 {labs[t]}')
        for t in range(7):
            a.label(labs[t])
            for ct in range(2):
                for q in range(4):
                    a(f'ds_write_b128 v224, {vr(16 * (7 * ct + t) + 4 * q)} offset:{4096 * ct + 1024 * q}')
            a('s_waitcnt lgkmcnt(0)')
            if t < 6:
                a(f's_branch {end}')
        a.label(end)
        a('v_pk_add_f32 v[224:225], v[0:1], v[2:3]')
        a('v_pk_add_f32 v[226:227], v[4:5], v[6:7]')
        a('v_pk_mul_f32 v[228:229], v[0:1], v[0:1]')
        a('v_pk_mul_f32 v[230:231], v[2:3], v[2:3]')
        for i in range(2, 112):
            if i >= 4:
                d = 224 + 2 * (i & 1)
                a(f'v_pk_add_f32 v[{d}:{d + 1}], v[{d}:{d + 1}], v[{2 * i}:{2 * i + 1}]')
            d = 228 + 2 * (i & 1)
            a(f'v_pk_fma_f32 v[{d}:{d + 1}], v[{2 * i}:{2 * i + 1}], v[{2 * i}:{2 * i + 1}], v[{d}:{d + 1}]')
        a('v_pk_add_f32 v[224:225], v[224:225], v[226:227]')
        a('v_pk_add_f32 v[228:229], v[228:229], v[230:231]')
        a('v_add_f32 v224, v224, v225')
        a('v_add_f32 v228, v228, v229')
        a('v_permlane32_swap_b32 v224, v228')
        a('v_add_f32 v224, v224, v228')
        a('v_mul_f32 v224, 0x3b124925, v224')
        a('v_mov_b32 v225, v224')
        a('v_permlane32_swap_b32 v224, v225')
        a('v_fma_f32 v225, -v224, v224, v225')
        a('v_max_f32 v225, 0, v225')
        a('v_add_f32 v225, 0x3727c5ac, v225')
        a('v_rsq_f32 v226, v225')
        a('v_mul_f32 v228, v224, v226')
        a('v_mov_b32 v227, v226')
        a('v_sub_f32 v228, 0, v228')
        a('v_mov_b32 v229, v228')
        for i in range(112):
            a(f'v_pk_fma_f32 v[{2 * i}:{2 * i + 1}], v[{2 * i}:{2 * i + 1}], v[226:227], v[228:229]')
            a(f'v_cvt_pk_bf16_f32 v{i}, v{2 * i}, v{2 * i + 1}')

    def swiglu(self, L, g, u, kst, tagname):
        out = []
        for i in range(16):
            out.append((f'v_mul_f32 v{u + i}, v{u + i}, v{g + i}', None))
            out.append((f'v_mul_f32 v{g + i}, 0xbfb8aa3b, v{g + i}', None))
        for i in range(16):
            out.append((f'v_exp_f32 v{g + i}, v{g + i}', None))
        for i in range(16):
            out.append((f'v_add_f32 v{g + i}, 1.0, v{g + i}', None))
        for i in range(16):
            out.append((f'v_rcp_f32 v{g + i}, v{g + i}', None))
        for i in range(16):
            out.append((f'v_mul_f32 v{u + i}, v{u + i}, v{g + i}', None))
        for i in range(8):
            out.append((f'v_cvt_pk_bf16_f32 v{g + i}, v{u + 2 * i}, v{u + 2 * i + 1}', None))
        so = 's94' if kst < 4 else 's95'
        for k in range(2):
            out.append((f'buffer_store_dwordx4 {vr(g + 4 * k)}, {vL16}, {WS}, {so} offen offset:{1024 * ((kst + k) & 3)} sc1', tagname))
        return out

    def wd_loads(self):
        out = []
        for n in range(28):
            if n < 14:
                v, ks = 'v249', 8 * n
            elif n < 21:
                v, ks = 'v252', 16 * (n - 14) + 4
            else:
                v, ks = 'v252', 16 * (n - 21) + 6
            for ct in range(2):
                out.append((f's_add_u32 {sC}, s96, {ks * 2048}\n'
                            f'buffer_load_dwordx4 {ar(8 * n + 4 * ct)}, {v}, {WS}, {sC} offen offset:{1024 * ct} sc1', 'wd'))
        return out

    def gemm1(self, L):
        a = self.a
        LB = L * LSTRIDE
        a(f'v_lshrrev_b32 v243, 5, {vLANE}')
        a('v_lshlrev_b32 v243, 10, v243')
        a(f'v_bfe_u32 v244, {vLANE}, 2, 2')
        a('v_lshl_add_u32 v243, v244, 7, v243')
        a(f'v_bfe_u32 v244, {vLANE}, 3, 1')
        a('v_lshl_add_u32 v243, v244, 6, v243')
        a(f'v_bfe_u32 v244, {vLANE}, 4, 1')
        a('v_lshl_add_u32 v243, v244, 5, v243')
        a(f'v_and_b32 v244, 1, {vLANE}')
        a('v_lshl_add_u32 v243, v244, 4, v243')
        a(f'v_bfe_u32 v244, {vLANE}, 1, 1')
        a('v_lshl_add_u32 v243, v244, 3, v243')
        a('v_xor_b32 v244, 64, v243')
        for b in (1, 2):
            a(f'v_add_u32 v{243 + 2 * b}, {65536 * b}, v243')
            a(f'v_add_u32 v{244 + 2 * b}, {65536 * b}, v244')
        a(f's_mul_i32 s94, {sT1}, 112')
        a(f's_lshl_b32 {sA}, {sJ}, 3')
        a(f's_add_u32 s94, s94, {sA}')
        a('s_lshl_b32 s94, s94, 10')
        a(f's_add_u32 s94, s94, {LB + HOFF}')
        a('s_add_u32 s95, s94, 4096')
        a(f's_lshl_b32 s97, {sT1}, 6')
        a(f's_add_u32 s97, s97, {sJ}')
        a('s_lshl_b32 s97, s97, 7')
        a(f's_add_u32 s97, s97, {LB + FC}')
        a('s_add_u32 s98, s97, 2048')
        a('s_add_u32 s99, s97, 4096')
        wdl = []
        if L == 0:
            a(f's_lshl_b32 {sA}, {sKAP}, 8')
            a(f'v_xor_b32 v249, {sA}, {vL16}')
            a(f's_lshl_b32 {sA}, {sKAP}, 14')
            a(f's_lshl_b32 {sB}, {sRT}, 11')
            a(f's_add_u32 {sA}, {sA}, {sB}')
            a(f'v_add_u32 v252, {sA}, v249')
            a(f's_lshl_b32 {sA}, {sW}, 11')
            a(f'v_add_u32 v249, {sA}, v249')
            a(f's_mul_i32 s96, {sCG}, {112 * 2048}')
            a(f's_add_u32 s96, s96, {WDOFF}')
            wdl = self.wd_loads()
        ring = 224
        G1 = {(0, 0): 112, (0, 1): 128, (1, 0): 144, (1, 1): 160}
        G2 = {(0, 0): 176, (1, 0): 192, (0, 1): 208, (1, 1): 224}
        seq = []
        for f in range(28):
            for u in range(2):
                for m in range(2):
                    seq.append((f, f, m, u, G1[(m, u)]))
        for u in range(2):
            for f in range(28):
                for m in range(2):
                    seq.append((28 + f, f, m, u, G2[(m, u)]))
        N = len(seq)
        AHEAD = 4

        def rd(i):
            q, f, m, u, acc = seq[i]
            s = self.slot(q)
            b = s // 16
            base = ring + 4 * (i % 8)
            return [f'ds_read_b64_tr_b16 {ar(base + 2 * jq, 2)}, v{243 + 2 * b + u} offset:{(s % 16) * 4096 + m * 2048 + jq * 512}'
                    for jq in range(2)]

        fill = [[] for _ in range(N)]
        for q in range(8, 36):
            fill[2 * (q - 8) + 1].append(self.w_dma(q))
        for q in range(36, 52):
            fill[64 + 2 * (q - 36) + 1].append(self.w_dma(q))
        for q in range(52, 56):
            fill[96 + 2 * (q - 52) + 1].append(self.w_dma(q))
        for i, w in enumerate(wdl):
            fill[4 * i + 2].append(w)
        s1 = self.swiglu(L, 112, 144, 0, 'h0') + self.swiglu(L, 128, 160, 2, 'h0')
        s2 = self.swiglu(L, 176, 192, 4, 'h1')
        g0, g1 = 113, 113 + 72
        for i, x in enumerate(s1):
            fill[g0 + i * (g1 - g0) // len(s1)].append(x)
        fill[g1 + 12].append(('WAITFLAG', ('h0', 's97')))
        g0, g1 = 186, 222
        for i, x in enumerate(s2):
            fill[g0 + i * (g1 - g0) // len(s2)].append(x)
        bars = {}
        for k in range(4, 28, 4):
            bars[4 * k - AHEAD] = k + 3
        bars[112 - AHEAD] = 41
        bars[112 + 28 - AHEAD] = 55
        for i in range(AHEAD):
            for t in rd(i):
                a(t)
        for i in range(N):
            q, f, m, u, acc = seq[i]
            if i in bars:
                a.wait_vm(f'w{bars[i]}')
                a('s_barrier')
            c = '0' if f == 0 else vr(acc, 16)
            a(f'v_mfma_f32_32x32x16_bf16 {vr(acc, 16)}, {ar(ring + 4 * (i % 8))}, {vr(4 * f)}, {c}')
            if i + AHEAD < N:
                for t in rd(i + AHEAD):
                    a(t)
            for t, tag in fill[i]:
                if t == 'WAITFLAG':
                    a.wait_vm(tag[0])
                    a(self.flag_store(tag[1])[0])
                else:
                    a(t, tag=tag)
        self.stamp(f'G{L}')
        for t, tag in self.swiglu(L, 208, 224, 6, 'h2'):
            a(t, tag=tag)
        a.wait_vm('h1')
        a(self.flag_store('s98')[0])
        a.wait_vm('h2')
        a(self.flag_store('s99')[0])

    def p2b(self, L):
        a = self.a
        LB = L * LSTRIDE
        a(f'v_bfe_u32 v243, {vLANE}, 4, 1')
        a('v_lshlrev_b32 v243, 5, v243')
        a(f'v_add_u32 v243, {sS2}, v243')
        a(f'v_and_b32 v244, 15, {vLANE}')
        a('v_min_u32 v244, 13, v244')
        a('v_lshl_add_u32 v243, v243, 6, v244')
        a('v_lshlrev_b32 v243, 7, v243')
        a(f'v_add_u32 v244, {sW1K}, {vL16}')
        a(f's_lshl_b32 {sA}, {sKAP}, 13')
        a(f's_lshl_b32 {sB}, {sRT}, 10')
        a(f's_add_u32 {sA}, {sA}, {sB}')
        a(f'v_add_u32 v245, {sA}, {vL16}')
        a(f's_mul_i32 s94, {sT1E}, {112 * 1024}')
        a(f's_add_u32 s94, s94, {LB + HOFF}')
        a(f's_xor_b32 {sA}, {sT1E}, 32')
        a(f's_mul_i32 s95, {sA}, {112 * 1024}')
        a(f's_add_u32 s95, s95, {LB + HOFF}')

        def hreg(n, o):
            i = 2 * n + o
            if i < 28:
                return 4 * i
            if i < 44:
                return 176 + 4 * (i - 28)
            return 4 * (i - 44)

        def hload(n):
            if n < 14:
                v, ks = 'v244', 8 * n
            elif n < 21:
                v, ks = 'v245', 16 * (n - 14) + 4
            else:
                v, ks = 'v245', 16 * (n - 21) + 6
            for o in range(2):
                a(f's_add_u32 {sC}, s{94 + o}, {ks * 1024}')
                a(f'buffer_load_dwordx4 {vr(hreg(n, o))}, {v}, {WS}, {sC} offen sc1')

        def mm(n):
            for o in range(2):
                for ct in range(2):
                    acc = vr(112 + 32 * o + 16 * ct, 16)
                    a(f'v_mfma_f32_32x32x16_bf16 {acc}, {ar(8 * n + 4 * ct)}, {vr(hreg(n, o))}, {"0" if n == 0 else acc}')

        a(f's_mov_b32 {sA}, {LB + FC}')
        self.poll('v243', sA, 246)
        for n in range(14):
            hload(n)
        a(f's_mov_b32 {sA}, {LB + FC + 2048}')
        self.poll('v243', sA, 246)
        for n in range(14, 21):
            hload(n)
        for n in range(0, 14):
            mm(n)
        a(f's_mov_b32 {sA}, {LB + FC + 4096}')
        self.poll('v243', sA, 246)
        self.stamp(f'C{L}')
        for n in range(21, 28):
            hload(n)
        for n in range(14, 28):
            mm(n)
        self.stamp(f'P{L}')
        a('s_barrier')
        for X in (1, 2, 3):
            a(f's_xor_b32 {sA}, {sW}, {X}')
            a(f's_mul_i32 {sA}, {sA}, 12288')
            a(f'v_add_u32 v243, {sA}, {vL16}')
            base = 112 + (32 if X & 1 else 0) + (8 if X & 2 else 0)
            for ct in range(2):
                for h in range(2):
                    a(f'ds_write_b128 v243, {vr(base + 16 * ct + 4 * h)} offset:{(X - 1) * 4096 + ct * 2048 + h * 1024}')
        a(f's_mul_i32 {sA}, {sW}, 12288')
        a(f'v_add_u32 v243, {sA}, {vL16}')
        a(f's_lshl_b32 {sA}, {sRT}, 13')
        a(f's_lshl_b32 {sB}, {sKAP}, 11')
        a(f's_add_u32 {sA}, {sA}, {sB}')
        a(f's_add_u32 {sA}, {sA}, {X1LDS}')
        a(f'v_add_u32 v244, {sA}, {vL16}')
        for ct in range(2):
            for h in range(2):
                a(f'ds_read_b128 {vr(176 + 8 * ct + 4 * h)}, v244 offset:{ct * 4096 + h * 1024}')
        for i in range(16):
            d = 112 + 16 * (i >> 3) + (i & 7)
            a(f'v_add_f32 v{d}, v{d}, v{176 + i}')
        a('s_waitcnt lgkmcnt(0)')
        a('s_barrier')
        for X in range(3):
            for k in range(4):
                a(f'ds_read_b128 {vr(192 + 16 * X + 4 * k)}, v243 offset:{X * 4096 + k * 1024}')
        for X in range(3):
            for i in range(16):
                d = 112 + 16 * (i >> 3) + (i & 7)
                a(f'v_add_f32 v{d}, v{d}, v{192 + 16 * X + i}')

    def final(self, D, M):
        a = self.a
        self.row_offsets('v1', 'v2', 'v3')
        for i in range(4):
            a(f'v_cvt_pk_bf16_f32 v{4 + i}, v{D + 2 * i}, v{D + 2 * i + 1}')
        a(f'buffer_store_dwordx4 v[4:7], v1, {SOUT}, 0 offen')
        for i in range(3):
            a(f'v_cvt_pk_bf16_f32 v{8 + i}, v{M + 6 - 2 * i}, v{M + 5 - 2 * i}')
        a(f'v_cvt_pk_bf16_f32 v11, v{M + 7}, v{M}')
        a(f'buffer_store_dwordx3 v[8:10], v2, {SOUT}, 0 offen offset:4')
        a(f'buffer_store_short v11, v2, {SOUT}, 0 offen offset:2')
        a(f'buffer_store_short_d16_hi v11, v3, {SOUT}, 0 offen')

    def build(self):
        a = self.a
        self.stamp_names = []
        self.init()
        self.stamp('start')
        self.p0()
        D, M, T = 200, 208, 160
        done = False
        for L in range(2):
            self.estage(L, D, M, T)
            if L == 0:
                self.wd_prep_keep_sC()
            self.p3_tables_issue_keep_sC()
            a.wait_vm('est')
            a(self.flag_store('s93')[0])
            self.stamp(f'E{L}')
            if self.stop == f'E{L}':
                break
            self.p3(L)
            self.stamp(f'T{L}')
            self.pre_b(L)
            if self.stop == f'T{L}':
                break
            a(f'v_mov_b32 {vTMP}, {vX0}')
            self.stage2(L)
            self.stamp(f'S{L}')
            self.norm(L)
            self.stamp(f'N{L}')
            self.gemm1(L)
            self.stamp(f'H{L}')
            if self.stop == f'H{L}':
                break
            self.p2b(L)
            self.stamp(f'R{L}')
            D, M, T = 112, 128, 176
            if L == 0:
                a('s_barrier')
        else:
            self.final(D, M)
        a.label('L_end')
        if self.stamps:
            self.stamp('end')
            a(f's_lshl_b32 {sA}, s2, 2')
            a(f's_add_u32 {sA}, {sA}, {sW}')
            a(f's_lshl_b32 {sA}, {sA}, 8')
            a(f's_add_u32 {sA}, {sA}, {STAMPOFF}')
            a(f'v_lshlrev_b32 v1, 2, {vLANE}')
            a(f'buffer_store_dword {vSTAMP}, v1, {WS}, {sA} offen')
        a('s_waitcnt vmcnt(0)')
        a.label('L_exit')
        a('s_endpgm')
        return a.finalize(True)

    def wd_prep_keep_sC(self):
        self.a(f's_mov_b32 s93, {sC}')
        self.wd_prep()
        self.a(f's_mov_b32 {sC}, s93')

    def p3_tables_issue_keep_sC(self):
        self.a(f's_mov_b32 s93, {sC}')
        self.p3_tables_issue()


def header():
    src = open('interleave_layers__spectral_fnet__swiglu_ffn__prompt.s.ref').read().split('\n')
    return '\n'.join(l for l in src if l.startswith(';') and '@launch' not in l) + '\n'


def make(path, dev=False, **kw):
    g = Gen(**kw)
    body = g.build()
    if dev:
        ll = f'; @launch kernel={NAME} grid=({NWG},1,1) block=(256,1,1) lds=163840'
    else:
        ll = f'; @launch grid=({NWG},1,1) block=(256,1,1) lds=163840'
    open(path, 'w').write(kernel_file(body, NAME, ll, header()))
    return g


if __name__ == '__main__':
    make('interleave_layers__spectral_fnet__swiglu_ffn__prompt.s')
```

```python
import sys, os
from asmgen import Asm, kernel_file

NAME = 'interleave_layers__spectral_fnet__swiglu_ffn__prompt_kernel'
NWG = 224
LSTRIDE = 0xE00000
FA, FB, FC = 0x0, 0x20000, 0x40000
STATOFF = 0xC0000
XOFF = 0x100000
STOFF = 0x2C0000
T1OFF = 0x480000
HOFF = 0x640000
FW = 0xD40000
CSOFF = 0xD80000
WDOFF = 2 * LSTRIDE
STAMPOFF = WDOFF + 0x200000
WS, SX, SW, SWD, SOUT = 's[4:7]', 's[8:11]', 's[12:15]', 's[16:19]', 's[20:23]'
DBG = 's[36:37]'
NONCE = 's[38:39]'
sW, sCG, sG, sS2, sS2P, sJ, sT1, sT1E, sMIR, sKAP, sRT, sSPIN = ['s%d' % i for i in range(64, 76)]
MASK0 = 's[76:77]'
MASKLO = 's[78:79]'
sSELLO, sSELHI, sHIMASK, sE, sW1K, sT1B, sDEL = ['s%d' % i for i in range(80, 87)]
sA, sB, sC, sD = 's40', 's41', 's42', 's43'
sFLA, sFLB, sHS, sHS2, sFC, sWDB, sH0, sH1, sWDB3, sH03, sH13, sPC = ['s%d' % i for i in range(44, 56)]
vWD, vWM, vWM0 = 'v240', 'v241', 'v242'
vNRL, vIR2 = 'v247', 'v254'
MU = 248
vSTAMP = 'v252'
vLANE = 'v253'
vL16 = 'v255'
SL0 = 4096
ULDS = 155648
NHEAD, NSLOT = 9, 37
SPIN_LIMIT = 300000
MF = 'v_mfma_f32_32x32x16_bf16'


def vr(b, n=4):
    return f'v[{b}:{b + n - 1}]'


def ar(b, n=4):
    return f'a[{b}:{b + n - 1}]'


def fl(x):
    import struct
    return '0x%08x' % struct.unpack('<I', struct.pack('<f', x))[0]


class Gen:
    def __init__(self, stop=None, stamps=False, **opt):
        self.a = Asm()
        self.stubs = []
        self.stop = stop
        self.stamps = stamps
        self.nstamp = 0
        self.nlab = 0
        self.opt = opt
        self.stamp_names = []

    def lab(self, p='L'):
        self.nlab += 1
        return f'{p}_{self.nlab}'

    def emit(self, items):
        for it in items:
            self.emit1(it)

    def emit1(self, it):
        a = self.a
        if callable(it):
            it()
        elif isinstance(it, tuple):
            a(it[0], tag=it[1])
        else:
            a(it)

    def stamp(self, name):
        if not self.stamps:
            return
        a = self.a
        a('s_memtime s[90:91]')
        a('s_waitcnt lgkmcnt(0)')
        a(f'v_writelane_b32 {vSTAMP}, s90, {self.nstamp}')
        self.stamp_names.append(name)
        self.nstamp += 1

    def srd(self, reg, lo, nbytes):
        b = int(reg[2:].split(':')[0])
        a = self.a
        a(f's_mov_b32 s{b}, s{lo}')
        a(f's_mov_b32 s{b + 1}, s{lo + 1}')
        a(f's_mov_b32 s{b + 2}, {nbytes}')
        a(f's_mov_b32 s{b + 3}, 0x20000')

    def flag_prep(self, t):
        return f'v_mov_b32 v{t}, s38\nv_mov_b32 v{t + 1}, s39'

    def flag_store(self, soff, t, off=0):
        o = f' offset:{off}' if off else ''
        return f's_mov_b64 exec, 1\nbuffer_store_dwordx2 v[{t}:{t + 1}], {vL16}, {WS}, {soff} offen{o} sc1\ns_mov_b64 exec, -1'

    def poll_issue(self, voff, soff, t, tag, off=0):
        o = f' offset:{off}' if off else ''
        ld = f'buffer_load_dwordx2 v[{t}:{t + 1}], {voff}, {WS}, {soff} offen{o} sc1'
        self.pending_poll = getattr(self, 'pending_poll', {})
        self.pending_poll[tag] = (ld, t)
        return (ld, tag)

    def poll_check(self, tag):
        a = self.a
        ld, t = self.pending_poll[tag]
        slow, back = self.lab('SLOW'), self.lab('BACK')
        a(f'v_cmp_ne_u64 vcc, v[{t}:{t + 1}], {NONCE}')
        a(f's_cbranch_vccnz {slow}')
        a.label(back)
        self.stubs.append(f'''{slow}:
  {ld}
  s_add_u32 {sSPIN}, {sSPIN}, 1
  s_cmp_gt_u32 {sSPIN}, {SPIN_LIMIT}
  s_cbranch_scc1 L_end
  s_waitcnt vmcnt(0)
  v_cmp_ne_u64 vcc, v[{t}:{t + 1}], {NONCE}
  s_nop 4
  s_cbranch_vccnz {slow}
  s_branch {back}
''')

    def init(self):
        a = self.a
        a(f's_cmp_ge_u32 s2, {NWG}')
        a('s_cbranch_scc1 L_exit')
        a('s_load_dwordx2 s[40:41], s[0:1], 0')
        a('s_load_dwordx4 s[52:55], s[0:1], 48')
        a('s_load_dwordx8 s[56:63], s[0:1], 64')
        a('s_memrealtime s[38:39]')
        a('s_getpc_b64 s[34:35]')
        a.label('L_pc')
        a('v_lshrrev_b32 v1, 6, v0')
        a(f'v_and_b32 {vLANE}, 63, v0')
        a(f'v_readfirstlane_b32 {sW}, v1')
        a(f'v_lshlrev_b32 {vL16}, 4, {vLANE}')
        a('s_lshr_b32 s89, s2, 3')
        a('s_lshl_b32 s88, s89, 12')
        a('v_lshl_add_u32 v2, v0, 4, s88')
        a('v_min_u32 v2, L_code_end-L_pc-16, v2')
        a('global_load_dwordx4 v[232:235], v2, s[34:35]')
        if self.stamps:
            a(f'v_mov_b32 {vSTAMP}, 0')
        a(f's_mov_b32 {sSPIN}, 0')
        a('s_and_b32 s88, s2, 7')
        a('s_mul_i32 s92, s89, 37')
        a('s_lshr_b32 s92, s92, 8')
        a('s_mul_i32 s93, s92, 7')
        a(f's_sub_u32 {sCG}, s89, s93')
        a('s_lshr_b32 s93, s88, 1')
        a('s_lshl_b32 s93, s93, 2')
        a(f's_add_u32 {sG}, s93, s92')
        a('s_and_b32 s88, s88, 1')
        a(f's_sub_u32 s93, 32, {sG}')
        a(f's_cmp_eq_u32 {sG}, 0')
        a('s_cselect_b32 s93, 16, s93')
        a('s_cmp_eq_u32 s88, 0')
        a(f's_cselect_b32 {sS2}, {sG}, s93')
        a(f's_cselect_b32 {sS2P}, s93, {sG}')
        a('s_mul_i32 s88, s88, 7')
        a(f's_add_u32 {sJ}, {sCG}, s88')
        a(f's_and_b32 {sRT}, {sW}, 1')
        a(f's_lshr_b32 {sKAP}, {sW}, 1')
        a(f's_lshl_b32 s88, {sRT}, 5')
        a(f's_add_u32 {sT1E}, {sS2}, s88')
        a(f's_add_u32 s89, {sS2P}, s88')
        a(f's_cmp_eq_u32 {sKAP}, 0')
        a(f's_cselect_b32 {sT1}, {sT1E}, s89')
        a(f's_cselect_b32 {sDEL}, 96, -15')
        a(f's_or_b32 s88, {sCG}, {sKAP}')
        a('s_cmp_eq_u32 s88, 0')
        a('s_cselect_b32 s76, -1, 0')
        a('s_mov_b32 s77, 0')
        self.row_offsets('v1', 'v2', 'v3', 'v4', 's88', 's89')
        a('s_waitcnt lgkmcnt(0)')
        self.srd(SX, 40, 1835008)
        a(f'buffer_load_dwordx4 v[4:7], v1, {SX}, 0 offen')
        a(f'buffer_load_dwordx4 v[8:11], v2, {SX}, 0 offen')
        a(f'buffer_load_ushort v12, v3, {SX}, 0 offen')
        a('s_mov_b32 s36, s60')
        a('s_mov_b32 s37, s61')
        a(f's_or_b32 s88, s2, {sW}')
        a('s_cmp_lg_u32 s88, 0')
        a('s_cbranch_scc1 L_nopub')
        a('s_or_b32 s38, s38, 1')
        a('v_mov_b32 v14, s38')
        a('v_mov_b32 v15, s39')
        a('s_mov_b64 exec, 1')
        a.raw(f'  global_store_dwordx2 {vL16}, v[14:15], {DBG} sc1')
        a('s_mov_b64 exec, -1')
        a.label('L_nopub')
        self.srd(SWD, 56, 1605632)
        a('v_min_u32 v176, 223, v0')
        a('v_lshlrev_b32 v177, 2, v176')
        a(f's_mul_i32 {sA}, s2, {8 * 896}')
        a(f's_add_u32 {sB}, {sA}, 3584')
        for r in range(8):
            a(f'buffer_load_dword v{180 + r}, v177, {SWD}, {sA if r < 4 else sB} offen offset:{(r & 3) * 896}')
        a(f's_cmp_eq_u32 {sKAP}, 0')
        a('s_cselect_b32 s12, s52, s54')
        a('s_cselect_b32 s13, s53, s55')
        a('s_mov_b32 s14, 1605632')
        a('s_mov_b32 s15, 0x20000')
        a(f's_lshl_b32 {sW1K}, {sW}, 10')
        self.emit(self.setup_w_addr(16))
        a(f's_min_u32 {sA}, {sG}, 13')
        a(f's_mul_i32 {sA}, {sA}, {32 * 3584}')
        for p in range(2):
            for kap in range(2):
                a(f's_add_u32 m0, {sW1K}, {SL0 + (2 * p + kap) * 4096}')
                a(f's_add_u32 {sB}, {sA}, {kap * 8 * 3584 + p * 128}')
                a(f'buffer_load_dwordx4 {vWD}, {SW}, {sB} offen lds', tag='csdma')
        self.srd(WS, 62, 0x10000000)
        self.srd(SOUT, 58, 1835008)
        a(f's_sub_u32 s88, 64, {sT1}')
        a('s_and_b32 s88, s88, 63')
        a(f's_lshr_b32 {sMIR}, s88, 5')
        a('s_and_b32 s88, s88, 31')
        a(f's_cmp_eq_u32 s88, {sS2}')
        a('s_cselect_b32 s88, 0, 2')
        a(f's_add_u32 {sMIR}, {sMIR}, s88')
        a('s_mov_b32 s78, -1')
        a('s_mov_b32 s79, 0')
        a(f's_mov_b32 {sSELLO}, 0x05040100')
        a(f's_mov_b32 {sSELHI}, 0x07060302')
        a(f's_mov_b32 {sHIMASK}, 0xffff0000')
        a(f's_mul_i32 {sT1B}, {sW}, 28672')
        a(f's_add_u32 {sT1B}, {sT1B}, {SL0}')
        a(f's_lshl_b32 s88, {sCG}, 1')
        a(f's_add_u32 s88, s88, {sKAP}')
        a(f's_mul_i32 {sE}, {sT1E}, 28')
        a(f's_add_u32 {sE}, {sE}, s88')
        a(f's_lshl_b32 {sE}, {sE}, 10')

    def row_offsets(self, vD, vM, vB, vT, s0, s1):
        a = self.a
        a(f'v_and_b32 {vD}, 31, {vLANE}')
        a(f'v_lshlrev_b32 {vD}, 6, {vD}')
        a(f'v_add_u32 {vD}, {sT1E}, {vD}')
        a(f'v_mul_u32_u24 {vD}, 896, {vD}')
        a(f'v_and_b32 {vM}, 32, {vLANE}')
        a(f's_lshl_b32 {s0}, {sCG}, 6')
        a(f's_lshl_b32 {s1}, {sKAP}, 4')
        a(f's_add_u32 {s0}, {s0}, {s1}')
        a(f'v_add_u32 {vM}, {s0}, {vM}')
        a(f'v_sub_u32 {vB}, {vD}, {vM}')
        a(f'v_add_u32 {vD}, {vD}, {vM}')
        a(f'v_add_u32 {vM}, 880, {vB}')
        a(f'v_add_u32 {vB}, 448, {vB}')
        a(f'v_add_u32 {vT}, 448, {vB}')
        a(f'v_cndmask_b32_e64 {vB}, {vT}, {vB}, {MASK0}')

    def p0_unpack(self, D, M):
        a = self.a
        for i in range(4):
            a(f'v_lshlrev_b32 v{D + 2 * i}, 16, v{4 + i}')
            a(f'v_and_b32 v{D + 2 * i + 1}, {sHIMASK}, v{4 + i}')
        a(f'v_lshlrev_b32 v{M}, 16, v12')
        for j in range(1, 8):
            e = 8 - j
            if e & 1:
                a(f'v_and_b32 v{M + j}, {sHIMASK}, v{8 + (e >> 1)}')
            else:
                a(f'v_lshlrev_b32 v{M + j}, 16, v{8 + (e >> 1)}')

    def wd_addr(self):
        o = []
        o.append(f's_movk_i32 {sB}, 224')
        o.append(f's_mov_b32 {sC}, {112 * 2048}')
        for h in range(2):
            d = 178 + h
            o.append('v_lshlrev_b32 v188, 1, v176')
            if h:
                o.append('v_add_u32 v188, 1, v188')
            o.append('v_sub_u32 v189, 448, v188')
            o.append(f'v_cmp_eq_u32 vcc, {sB}, v188')
            o.append('v_cndmask_b32_e64 v189, v189, 0, vcc')
            o.append(f'v_cmp_gt_u32 vcc, {sB}, v188')
            o.append('v_cndmask_b32 v189, v189, v188, vcc')
            o.append(f'v_mov_b32 v{d}, 1024')
            o.append(f'v_cndmask_b32_e64 v{d}, v{d}, 0, vcc')
            o.append('v_lshrrev_b32 v190, 5, v189')
            o.append(f'v_mul_lo_u32 v190, v190, {sC}')
            o.append(f'v_add_u32 v{d}, v{d}, v190')
            o.append('v_and_b32 v190, 3, v189')
            o.append('v_bfe_u32 v191, v189, 2, 2')
            o.append('v_lshl_add_u32 v190, v191, 3, v190')
            o.append('v_bfe_u32 v191, v189, 4, 1')
            o.append('v_lshl_add_u32 v190, v191, 2, v190')
            o.append(f'v_lshl_add_u32 v{d}, v190, 4, v{d}')
        return o

    def wd_prep(self):
        a = self.a
        for m in range(4):
            a(f'v_perm_b32 v{188 + m}, v{181 + 2 * m}, v{180 + 2 * m}, {sSELLO}')
            a(f'v_perm_b32 v{192 + m}, v{181 + 2 * m}, v{180 + 2 * m}, {sSELHI}')
        a(f's_lshr_b32 {sA}, s2, 1')
        a(f's_lshl_b32 {sA}, {sA}, 11')
        a(f's_and_b32 {sB}, s2, 1')
        a(f's_lshl_b32 {sB}, {sB}, 9')
        a(f's_add_u32 {sA}, {sA}, {sB}')
        a(f's_add_u32 {sA}, {sA}, {WDOFF}')
        for h in range(2):
            a(f'buffer_store_dwordx4 {vr(188 + 4 * h)}, v{178 + h}, {WS}, {sA} offen sc1')

    def tr_base(self, d, t):
        return [f'v_lshrrev_b32 v{d}, 5, {vLANE}',
                f'v_lshlrev_b32 v{d}, 10, v{d}',
                f'v_bfe_u32 v{t}, {vLANE}, 2, 2',
                f'v_lshl_add_u32 v{d}, v{t}, 7, v{d}',
                f'v_bfe_u32 v{t}, {vLANE}, 3, 1',
                f'v_lshl_add_u32 v{d}, v{t}, 6, v{d}',
                f'v_bfe_u32 v{t}, {vLANE}, 4, 1',
                f'v_mul_u32_u24 v{t}, 2080, v{t}',
                f'v_add_u32 v{d}, v{t}, v{d}',
                f'v_and_b32 v{t}, 1, {vLANE}',
                f'v_lshl_add_u32 v{d}, v{t}, 4, v{d}',
                f'v_bfe_u32 v{t}, {vLANE}, 1, 1',
                f'v_lshl_add_u32 v{d}, v{t}, 3, v{d}']

    def colsum_produce(self):
        a = self.a
        a.wait_vm('csdma')
        a('s_barrier')
        for t in range(2):
            for kap in range(2):
                for jq in range(2):
                    a(f'ds_read_b64_tr_b16 {ar(8 * t + 4 * kap + 2 * jq, 2)}, v{196 + t} offset:{SL0 + kap * 4096 + jq * 512}')
        for t in range(2):
            for kap in range(2):
                acc = ar(32 + 16 * t, 16)
                a(f'{MF} {acc}, {vr(216)}, {ar(8 * t + 4 * kap)}, {"0" if kap == 0 else acc}')
        a(f's_lshl_b32 {sA}, {sJ}, 2')
        a(f's_add_u32 {sA}, {sA}, {sW}')
        a(f's_lshl_b32 {sA}, {sA}, 4')
        a(f's_add_u32 {sA}, {sA}, {sG}')
        a(f's_lshl_b32 {sA}, {sA}, 8')
        a(f's_add_u32 {sA}, {sA}, {CSOFF}')
        a('v_accvgpr_read_b32 v196, a32')
        a('v_accvgpr_read_b32 v197, a48')
        a(f'buffer_store_dwordx2 v[196:197], v198, {WS}, {sA} offen sc1')

    def colsum_addr(self):
        o = self.tr_base(196, 197)
        o += [f's_lshl_b32 {sA}, {sRT}, 6',
              f'v_xor_b32 v196, {sA}, v196',
              f's_lshl_b32 {sA}, {sKAP}, 13',
              f'v_add_u32 v196, {sA}, v196',
              'v_xor_b32 v197, 32, v196',
              f'v_and_b32 v198, 31, {vLANE}',
              'v_lshlrev_b32 v198, 3, v198']
        o += [f'v_mov_b32 v{216 + i}, 0x3f803f80' for i in range(4)]
        return o

    def estage(self, L, D, M, T):
        a = self.a
        LB = L * LSTRIDE
        S_, T_, P = T, T + 8, T + 16
        for j in range(8):
            a(f'v_add_f32 v{S_ + j}, v{D + j}, v{M + j}')
            a(f'v_sub_f32 v{T_ + j}, v{D + j}, v{M + j}')
        q = T + 32
        a(f'v_add_f32 v{q}, v{S_}, v{S_ + 1}')
        a(f'v_cndmask_b32_e64 v{S_}, v{S_}, v{D}, {MASK0}')
        a(f'v_cndmask_b32_e64 v{T_}, v{T_}, v{M}, {MASK0}')
        for i in range(4):
            a(f'v_cvt_pk_bf16_f32 v{P + i}, v{S_ + 2 * i}, v{S_ + 2 * i + 1}')
        a(f's_add_u32 {sA}, {sE}, {LB + STOFF}')
        a(f'buffer_store_dwordx4 {vr(P)}, {vL16}, {WS}, {sA} offen sc1')
        for i in range(4):
            a(f'v_cvt_pk_bf16_f32 v{P + 4 + i}, v{T_ + 2 * i}, v{T_ + 2 * i + 1}')
        a(f's_add_u32 {sB}, {sE}, {LB + STOFF + 14336}')
        a(f'buffer_store_dwordx4 {vr(P + 4)}, {vL16}, {WS}, {sB} offen sc1')
        for i in range(4):
            a(f'v_cvt_pk_bf16_f32 v{P + 8 + i}, v{D + 2 * i}, v{D + 2 * i + 1}')
        a(f's_add_u32 {sA}, {sE}, {LB + XOFF}')
        a(f'buffer_store_dwordx4 {vr(P + 8)}, {vL16}, {WS}, {sA} offen sc1')
        for i in range(4):
            a(f'v_cvt_pk_bf16_f32 v{P + 12 + i}, v{M + 2 * i}, v{M + 2 * i + 1}')
        a(f's_add_u32 {sB}, {sE}, {LB + XOFF + 14336}')
        a(f'buffer_store_dwordx4 {vr(P + 12)}, {vL16}, {WS}, {sB} offen sc1')
        a(f'v_mul_f32 v{q + 1}, v{D}, v{D}')
        a(f'v_mul_f32 v{q + 2}, v{M}, v{M}')
        for j in range(1, 8):
            if j >= 2:
                a(f'v_add_f32 v{q}, v{q}, v{S_ + j}')
            a(f'v_fmac_f32 v{q + 1}, v{D + j}, v{D + j}')
            a(f'v_fmac_f32 v{q + 2}, v{M + j}, v{M + j}')
        a(f'v_add_f32 v{q + 1}, v{q + 1}, v{q + 2}')
        a(f'v_lshlrev_b32 v{q + 2}, 2, {vLANE}')
        a(f's_lshl_b32 {sC}, {sCG}, 1')
        a(f's_add_u32 {sC}, {sC}, {sKAP}')
        a(f's_lshl_b32 {sD}, {sT1E}, 4')
        a(f's_add_u32 {sC}, {sC}, {sD}')
        a(f'v_permlane32_swap_b32 v{q}, v{q + 1}')
        a(f's_lshl_b32 {sD}, {sC}, 8')
        a(f's_add_u32 {sD}, {sD}, {LB + STATOFF}')
        a(f'v_add_f32 v{q}, v{q}, v{q + 1}')
        a(f'buffer_store_dword v{q}, v{q + 2}, {WS}, {sD} offen sc1', tag='est')
        a(f's_lshl_b32 {sFLA}, {sC}, 7')
        if LB + FA:
            a(f's_add_u32 {sFLA}, {sFLA}, {LB + FA}')

    def tables(self, TB=20):
        o = []
        o += [f'v_and_b32 v156, 3, {vLANE}',
              f'v_bfe_u32 v157, {vLANE}, 3, 2',
              'v_lshl_add_u32 v156, v157, 2, v156',
              f'v_bfe_u32 v157, {vLANE}, 2, 1',
              'v_lshl_add_u32 v156, v157, 4, v156',
              f's_lshl_b32 {sA}, {sCG}, 5',
              f'v_add_u32 v156, {sA}, v156',
              'v_mov_b32 v157, 224',
              'v_cmp_eq_u32 vcc, 0, v156',
              'v_cndmask_b32 v156, v156, v157, vcc',
              'v_cvt_f32_u32 v156, v156',
              f'v_mul_f32 v156, {fl(1 / 448)}, v156',
              f'v_lshrrev_b32 v159, 5, {vLANE}',
              'v_cvt_f32_u32 v159, v159',
              f's_cmp_eq_u32 {sKAP}, 0',
              f's_cselect_b32 {sA}, 0, {fl(0.25)}',
              f'v_mul_f32 v157, {fl(16.0)}, v156',
              f'v_fma_f32 v157, v157, v159, {sA}',
              f'v_mul_f32 v158, {fl(32.0)}, v156',
              'v_cos_f32 v158, v158']
        for m in range(32):
            c = m if m < 16 else 16 + m
            o.append(f'v_fmamk_f32 v{124 + m}, v156, {fl(float(c))}, v157')
        o.append('v_add_f32 v158, v158, v158')
        for m in range(32):
            o.append(f'v_cos_f32 v{124 + m}, v{124 + m}')
        for tau in range(7):
            P = 124 + 16 * (tau & 1)
            Q = 124 + 16 * (1 - (tau & 1))
            if tau >= 2:
                for m in range(16):
                    o.append(f'v_fma_f32 v{P + m}, v158, v{Q + m}, -v{P + m}')
            for i in range(8):
                o.append(f'v_cvt_pk_bf16_f32 v{TB + 8 * tau + i}, v{P + 2 * i}, v{P + 2 * i + 1}')
        X = TB + 56
        o += [f'v_and_b32 v160, 1, {vLANE}',
              f'v_lshlrev_b32 v{X}, 15, v160',
              f'v_or_b32 v{X}, 0x3f80, v{X}',
              f's_cmp_eq_u32 {sKAP}, 0',
              's_cselect_b32 s88, -1, 0',
              's_mov_b32 s89, 0',
              f'v_cndmask_b32_e64 v{X}, 0, v{X}, s[88:89]',
              f'v_mov_b32 v{X + 1}, 0', f'v_mov_b32 v{X + 2}, 0', f'v_mov_b32 v{X + 3}, 0',
              'v_mul_u32_u24 v160, 0x8000, v160',
              'v_lshl_add_u32 v160, v160, 16, v160',
              f'v_and_b32 v156, 31, {vLANE}',
              f's_lshl_b32 {sA}, {sKAP}, 5',
              f'v_add_u32 v156, {sA}, v156',
              'v_cvt_f32_u32 v156, v156',
              f's_lshl_b32 {sA}, {sRT}, 31',
              f's_or_b32 {sA}, {sA}, {fl(1 / 64)}',
              f'v_mul_f32 v156, {sA}, v156',
              f'v_mul_f32 v157, {fl(8.0)}, v156',
              'v_mul_f32 v157, v157, v159']
        idx = [(rt, jq, i) for rt in range(2) for jq in range(2) for i in range(4)]
        for n, (rt, jq, i) in enumerate(idx):
            o.append(f'v_fmamk_f32 v{124 + n}, v156, {fl(float(16 * jq + 2 * i + rt))}, v157')
        for n in range(16):
            o.append(f'v_sin_f32 v{140 + n}, v{124 + n}')
            o.append(f'v_cos_f32 v{124 + n}, v{124 + n}')
        for tab in range(2):
            for rt in range(2):
                for k in range(4):
                    d = 92 + 16 * tab + 8 * rt + k
                    s = 124 + 16 * tab + 8 * rt + 2 * k
                    o.append(f'v_cvt_pk_bf16_f32 v{d}, v{s}, v{s + 1}')
                for k in range(4):
                    d = 92 + 16 * tab + 8 * rt + k
                    o.append(f'v_xor_b32 v{d + 4}, v160, v{d}')
        return o

    def pollA_addr(self):
        return [f'v_and_b32 v80, 15, {vLANE}',
                'v_min_u32 v80, 13, v80',
                f'v_mov_b32 v81, {sT1E}',
                f'v_mov_b32 v82, {sT1}',
                f'v_and_b32 v83, 16, {vLANE}',
                'v_cmp_eq_u32 vcc, 0, v83',
                'v_cndmask_b32 v81, v82, v81, vcc',
                'v_lshl_add_u32 v80, v81, 4, v80',
                'v_lshlrev_b32 v80, 7, v80']

    def p3_addr(self, L):
        LB = L * LSTRIDE
        return [f'v_lshlrev_b32 v84, 2, {vLANE}',
                f's_lshl_b32 {sA}, {sRT}, 12',
                f's_lshl_b32 {sB}, {sKAP}, 11',
                f's_add_u32 {sA}, {sA}, {sB}',
                f's_add_u32 {sA}, {sA}, {ULDS}',
                f'v_add_u32 v87, {sA}, {vL16}',
                f'v_and_b32 v85, 31, {vLANE}',
                'v_lshlrev_b32 v90, 7, v85',
                f'v_lshl_add_u32 v85, v85, 2, {sA}',
                f'v_lshrrev_b32 v86, 5, {vLANE}',
                'v_lshl_add_u32 v90, v86, 5, v90',
                f'v_lshl_add_u32 v86, v86, 4, {sA}',
                f's_lshl_b32 {sA}, {sRT}, 11',
                f's_add_u32 {sB}, {sA}, {ULDS}',
                f'v_add_u32 v88, {sB}, {vL16}',
                f's_xor_b32 {sA}, {sA}, 2048',
                f's_add_u32 {sB}, {sA}, {ULDS}',
                f'v_add_u32 v89, {sB}, {vL16}',
                f's_mul_i32 s93, {sT1E}, 28672',
                f's_add_u32 s93, s93, {LB + STOFF + 14336}',
                f's_cmp_eq_u32 {sKAP}, 0',
                f's_cselect_b32 {sB}, 14336, 0',
                f's_sub_u32 s92, s93, {sB}',
                f's_lshl_b32 s94, {sT1E}, 12',
                f's_add_u32 s94, s94, {LB + STATOFF}',
                f's_mul_i32 s95, {sT1}, 28672',
                f's_add_u32 s95, s95, {LB + XOFF}',
                f's_mul_i32 {sC}, {sS2}, 7',
                f's_add_u32 {sC}, {sC}, {sCG}',
                f's_lshl_b32 s96, {sC}, 13',
                f's_lshl_b32 {sB}, {sKAP}, 12',
                f's_add_u32 s96, s96, {sB}',
                f's_lshl_b32 {sB}, {sRT}, 6',
                f's_add_u32 s96, s96, {sB}',
                f's_add_u32 s96, s96, {LB + T1OFF}',
                f's_lshl_b32 {sFLB}, {sC}, 7',
                f's_lshl_b32 {sB}, {sW}, 15',
                f's_add_u32 {sFLB}, {sFLB}, {sB}',
                f's_add_u32 {sFLB}, {sFLB}, {LB + FB}',
                f's_mov_b32 s97, {LB + FA}']

    def p3(self, L):
        a = self.a
        TB = 20
        self.emit1(self.poll_issue('v80', 's97', 82, 'pA'))
        self.poll_check('pA')
        self.stamp(f'A{L}')
        a(f'buffer_load_dwordx4 {vr(180)}, {vL16}, {WS}, s93 offen sc1')
        for f in range(14):
            if f and f % 4 == 0:
                a('s_add_u32 s92, s92, 4096')
            a(f'buffer_load_dwordx4 {vr(124 + 4 * f)}, {vL16}, {WS}, s92 offen offset:{1024 * (f & 3)} sc1')
        for f in range(14):
            a(f'buffer_load_dword v{184 + f}, v84, {WS}, s94 offen offset:{256 * f} sc1')
        xl = []
        for i in range(7):
            for k in range(4):
                pre = ''
                if k == 0:
                    pre = f's_add_u32 m0, {sT1B}, {4096 * i}\n' + ('s_add_u32 s95, s95, 4096\n' if i else '')
                xl.append((pre + f'buffer_load_dwordx4 {vL16}, {WS}, s95 offen offset:{1024 * k} sc1 lds', 'xdma'))
        if L == 0:
            xl += [self.w_dma(q) for q in range(NHEAD)]
        nx0 = self.opt.get('nx0', 12)
        self.emit(xl[:nx0])
        xl = xl[nx0:]
        a(f'{MF} {vr(200, 16)}, {vr(180)}, {vr(TB + 56)}, 0')
        for f in range(14):
            a(f'{MF} {vr(200, 16)}, {vr(124 + 4 * f)}, {vr(TB + 4 * f)}, {vr(200, 16)}')
        for i in range(7):
            a(f'v_add_f32 v{184 + i}, v{184 + i}, v{191 + i}')
        a('v_add_f32 v184, v184, v185')
        a('v_add_f32 v186, v186, v187')
        a('v_add_f32 v188, v188, v189')
        a('v_add_f32 v184, v184, v186')
        a('v_add_f32 v188, v188, v190')
        a('v_add_f32 v184, v184, v188')
        a(f'v_mul_f32 v184, {fl(1 / 448)}, v184')
        a('v_mov_b32 v185, v184')
        a('v_permlane32_swap_b32 v184, v185')
        a('v_fma_f32 v185, -v184, v184, v185')
        a('v_max_f32 v185, 0, v185')
        a('v_add_f32 v185, 0x3727c5ac, v185')
        a('v_rsq_f32 v185, v185')
        a('ds_write_b32 v85, v185')
        for q in range(4):
            a(f'ds_read_b128 {vr(216 + 4 * q)}, v86 offset:{32 * q}')
        for i in range(16):
            a(f'v_mul_f32 v{200 + i}, v{200 + i}, v{216 + i}')
        for i in range(8):
            a(f'v_cvt_pk_bf16_f32 v{216 + i}, v{200 + 2 * i}, v{201 + 2 * i}')
        a(f'ds_write_b128 v87, {vr(216)}')
        a(f'ds_write_b128 v87, {vr(220)} offset:1024')
        a('s_waitcnt lgkmcnt(0)')
        a('s_barrier')
        for tab in range(2):
            for rt in range(2):
                for kap in range(2):
                    a(f'ds_read_b128 {vr(124 + 16 * tab + 8 * rt + 4 * kap)}, v{88 + tab} offset:{4096 * rt + 1024 * kap}')
        for i in range(8):
            c = '0' if i == 0 else vr(200, 16)
            a(f'{MF} {vr(200, 16)}, {vr(124 + 4 * i)}, {vr(92 + 4 * i)}, {c}')
        for i in range(8):
            a(f'v_cvt_pk_bf16_f32 v{216 + i}, v{200 + 2 * i}, v{201 + 2 * i}')
        a(f'buffer_store_dwordx4 {vr(216)}, v90, {WS}, s96 offen sc1')
        a(f'buffer_store_dwordx4 {vr(220)}, v90, {WS}, s96 offen offset:16 sc1', tag='t1st')
        self.emit(xl)

    @staticmethod
    def slot(q):
        return 28 + q if q < NHEAD else (q - NHEAD if q < NSLOT else Gen.slot(q - NSLOT))

    def w_dma(self, q):
        p, f = divmod(q, 28)
        tau, ct, kap = f >> 2, (f >> 1) & 1, f & 1
        rowb = 32 * tau + 8 * kap
        if ct == 0:
            v, so = vWD, rowb * 3584 + p * 128
        elif rowb == 0:
            v, so = vWM0, p * 128
        else:
            v, so = vWM, (425 - rowb) * 3584 + p * 128
        return (f's_add_u32 m0, {sW1K}, {SL0 + self.slot(q) * 4096}\ns_mov_b32 {sD}, {so}\n'
                f'buffer_load_dwordx4 {v}, {SW}, {sD} offen lds', f'w{q}')

    def setup_w_addr(self, t):
        x, y, z = f'v{t}', f'v{t + 1}', f'v{t + 2}'
        return [f'v_lshrrev_b32 {x}, 3, {vLANE}',
                f'v_bfe_u32 {y}, {vLANE}, 4, 1',
                f'v_lshlrev_b32 {y}, 2, {y}',
                f'v_and_b32 {z}, 7, {vLANE}',
                f'v_xor_b32 {y}, {y}, {z}',
                f's_lshl_b32 {sA}, {sKAP}, 1',
                f'v_xor_b32 {y}, {sA}, {y}',
                f's_lshl_b32 {sA}, {sJ}, 8',
                f'v_lshl_add_u32 {y}, {y}, 4, {sA}',
                f's_lshl_b32 {sA}, {sRT}, 4',
                f'v_add_u32 {x}, {sA}, {x}',
                f'v_mul_u32_u24 {z}, 3584, {x}',
                f'v_add_u32 {vWD}, {z}, {y}',
                f'v_sub_u32 {vWM}, {y}, {z}',
                f'v_add_u32 {vWM0}, {448 * 3584}, {vWM}',
                f'v_add_u32 {z}, {224 * 3584}, {vWM}',
                f'v_cmp_eq_u32 vcc, 0, {x}',
                f'v_cndmask_b32 {vWM0}, {vWM0}, {z}, vcc',
                f'v_add_u32 {vWM}, {23 * 3584}, {vWM}']

    def kstep_of(self, n):
        m, i = divmod(n, 7)
        if i < 3:
            return False, 32 * i + 2 * m
        if i == 3:
            return True, 2 * m
        return False, 8 * (4 * i - 14) + 1 + 2 * m

    def wd_loads(self, v):
        out = []
        for n in range(28):
            dl, ks = self.kstep_of(n)
            for ct in range(2):
                pre = f's_add_u32 {sC}, {sWDB3 if dl else sWDB}, {ks * 2048}\n'
                out.append((pre + f'buffer_load_dwordx4 {ar(8 * n + 4 * ct)}, {v}, {WS}, {sC} offen offset:{1024 * ct} sc1', 'wd'))
        return out

    def wd_voff(self, v):
        return [f's_lshl_b32 {sA}, {sKAP}, 8',
                f'v_xor_b32 {v}, {sA}, {vL16}',
                f's_lshl_b32 {sA}, {sW}, 14',
                f'v_add_u32 {v}, {sA}, {v}']

    def pre_b(self, L):
        a = self.a
        LB = L * LSTRIDE
        self.wdl = []
        if L == 0:
            a(f'v_min_u32 v0, 55, {vLANE}')
            a('v_lshrrev_b32 v1, 1, v0')
            a('v_mul_u32_u24 v2, 37, v1')
            a('v_lshrrev_b32 v2, 8, v2')
            a('v_mul_u32_u24 v3, 7, v2')
            a('v_sub_u32 v1, v1, v3')
            a(f'v_lshl_add_u32 v1, v1, 2, {sW}')
            a('v_lshlrev_b32 v3, 3, v1')
            a('v_add_u32 v4, -111, v3')
            a('v_cmp_lt_u32 vcc, 13, v1')
            a('v_cndmask_b32 v3, v3, v4, vcc')
            a('v_lshl_add_u32 v3, v2, 1, v3')
            a('v_and_b32 v0, 1, v0')
            a('v_lshl_add_u32 v0, v3, 1, v0')
            a('v_lshlrev_b32 v250, 7, v0')
            a(f's_mov_b32 s98, {FW}')
            self.emit1(self.poll_issue('v250', 's98', 248, 'pW'))
            a(f's_mul_i32 {sWDB}, {sCG}, {112 * 2048}')
            a(f's_add_u32 {sWDB}, {sWDB}, {WDOFF}')
            a(f's_lshl_b32 {sA}, {sDEL}, 11')
            a(f's_add_u32 {sWDB3}, {sWDB}, {sA}')
            self.emit(self.wd_voff('v251'))
        tw = [f'v_and_b32 v0, 31, {vLANE}',
              f'v_lshl_add_u32 v0, v0, 6, {sT1}',
              'v_cvt_f32_u32 v0, v0',
              f'v_mul_f32 v0, {fl(1 / 2048)}, v0',
              f'v_lshrrev_b32 v1, 5, {vLANE}',
              'v_lshlrev_b32 v1, 4, v1',
              'v_cvt_f32_u32 v1, v1',
              'v_mul_f32 v1, v1, v0']
        for e in range(16):
            tw.append(f'v_fmamk_f32 v{2 + e}, v0, {fl(float(e))}, v1')
        for e in range(16):
            tw.append(f'v_sin_f32 v{18 + e}, v{2 + e}')
            tw.append(f'v_cos_f32 v{2 + e}, v{2 + e}')
        for e in range(16):
            tw.append(f'v_cvt_pk_bf16_f32 v{224 + e}, v{2 + e}, v{18 + e}')
            tw.append(f'v_cvt_pk_bf16_f32 v{2 + e}, v{2 + e}, -v{18 + e}')
        for e in range(16):
            tw.append(f'v_accvgpr_write_b32 a{224 + e}, v{2 + e}')
        tw += [f'v_lshrrev_b32 v243, 5, {vLANE}',
               'v_lshlrev_b32 v243, 11, v243',
               f'v_bfe_u32 v244, {vLANE}, 2, 2',
               'v_lshl_add_u32 v243, v244, 6, v243',
               f'v_and_b32 v244, 1, {vLANE}',
               'v_lshl_add_u32 v243, v244, 5, v243',
               f'v_bfe_u32 v244, {vLANE}, 4, 1',
               'v_lshl_add_u32 v243, v244, 4, v243',
               f'v_bfe_u32 v244, {vLANE}, 1, 1',
               'v_lshl_add_u32 v243, v244, 3, v243',
               f's_mul_i32 {sA}, {sMIR}, 28672',
               f's_add_u32 {sA}, {sA}, {SL0}',
               f'v_add_u32 v244, {sA}, v243',
               f'v_add_u32 v243, {sT1B}, v243',
               f'v_lshrrev_b32 v245, 3, {vLANE}',
               'v_mul_u32_u24 v245, 57344, v245',
               f'v_and_b32 v246, 7, {vLANE}',
               'v_lshl_add_u32 v245, v246, 4, v245',
               f's_lshl_b32 {sA}, {sW}, 6',
               f'v_add_u32 v246, {sA}, {vLANE}',
               f'v_min_u32 v246, {NWG - 1}, v246',
               'v_lshlrev_b32 v246, 7, v246',
               f'v_add_u32 v247, {sT1B}, {vL16}',
               self.flag_prep(40)]
        self.emit(tw)
        a.wait_vm('t1st')
        self.stamp(f'Td{L}')
        a('s_barrier')
        a(self.flag_store(sFLB, 40))
        if L == 0:
            self.poll_check('pW')
            self.wdl = self.wd_loads('v251')
            nw = self.opt.get('nwd_early', 20)
            self.emit(self.wdl[:nw])
            self.nw_done = nw
        a.wait_vm('xdma')
        for f in range(28):
            tau, ct, kap = f >> 2, (f >> 1) & 1, f & 1
            a(f'ds_read_b128 {vr(112 + 4 * f)}, v247 offset:{(ct * 14 + tau * 2 + kap) * 1024}')
        for r in range(112):
            a(f'v_lshlrev_b32 v{2 * r}, 16, v{112 + r}')
            a(f'v_and_b32 v{2 * r + 1}, {sHIMASK}, v{112 + r}')
        a('v_mov_b32 v247, v0')
        self.stamp(f'X{L}')

    def stat_ops(self, tau, first=False):
        o = []
        for i in range(32):
            r = 32 * tau + i
            s, q = ('v248', 'v250') if i & 1 == 0 else ('v249', 'v254')
            if first and i < 2:
                o.append(f'v_mov_b32 {s}, v{r}')
                o.append(f'v_mul_f32 {q}, v{r}, v{r}')
            else:
                o.append(f'v_add_f32 {s}, {s}, v{r}')
                o.append(f'v_fmac_f32 {q}, v{r}, v{r}')
        return o

    def cvt_ops(self, tau):
        return [f'v_cvt_pk_bf16_f32 v{16 * tau + i}, v{32 * tau + 2 * i}, v{32 * tau + 2 * i + 1}' for i in range(16)]

    def stage2(self, L):
        a = self.a
        LB = L * LSTRIDE
        a(f's_mov_b32 s98, {LB + FB}')
        self.emit1(self.poll_issue('v246', 's98', 248, 'pB'))
        self.poll_check('pB')
        a('s_barrier')
        self.stamp(f'B{L}')
        a(f's_lshl_b32 {sA}, {sT1}, 7')
        for cg in range(7):
            for i in range(4):
                a(f's_add_u32 m0, {sT1B}, {cg * 4096 + i * 1024}')
                a(f's_add_u32 {sB}, {sA}, {LB + T1OFF + cg * 8192 + i * 8 * 57344}')
                a(f'buffer_load_dwordx4 v245, {WS}, {sB} offen sc1 lds', tag=f't1_{cg}')
        self.stamp(f'Bi{L}')
        ring = 240

        def rd(tau, ct, k4):
            for jq in range(2):
                a(f'ds_read_b64_tr_b16 {ar(ring + 4 * k4 + 2 * jq, 2)}, v{243 + ct} offset:{tau * 4096 + k4 * 512 + jq * 256}')

        for tau in range(7):
            fill = []
            if tau >= 1:
                if tau == 1:
                    fill.append(f'v_cndmask_b32_e64 v0, v0, v247, {MASKLO}')
                fill += self.stat_ops(tau - 1, tau == 1) + self.cvt_ops(tau - 1)
            a.wait_vm(f't1_{tau}')
            a('s_barrier')
            for k4 in range(4):
                rd(tau, 0, k4)
            n0 = min(len(fill), 24)
            self.emit(fill[:n0])
            fill = fill[n0:]
            per = (len(fill) + 7) // 8
            for u in range(8):
                ct, k4 = divmod(u, 4)
                acc = vr(32 * tau + 16 * ct, 16)
                tw = vr(224 + 4 * k4) if ct == 0 else ar(224 + 4 * k4)
                a(f'{MF} {acc}, {ar(ring + 4 * k4)}, {tw}, {acc}')
                if ct == 0:
                    rd(tau, 1, k4)
                self.emit(fill[u * per:(u + 1) * per])
        a('s_barrier')

    def swiglu(self, b, kst, tag):
        g, u = b, b + 8
        out = []
        for k in range(10):
            if k < 8:
                out.append(f'v_mul_f32 v{u + k}, v{u + k}, v{g + k}')
                out.append(f'v_mul_f32 v{g + k}, {vNRL}, v{g + k}')
            if 1 <= k <= 8:
                out.append(f'v_fma_f32 v{g + k - 1}, v{g + k - 1}, {vIR2}, {vIR2}')
            if k < 8:
                out.append(f'v_exp_f32 v{g + k}, v{g + k}')
            if k >= 2:
                out.append(f'v_mul_f32 v{u + k - 2}, v{u + k - 2}, v{g + k - 2}')
            if 1 <= k <= 8:
                out.append(f'v_rcp_f32 v{g + k - 1}, v{g + k - 1}')
            if k >= 3 and k & 1:
                i = k - 2
                out.append(f'v_cvt_pk_bf16_f32 v{g + (i >> 1)}, v{u + i - 1}, v{u + i}')
        so = sHS if kst < 4 else sHS2
        out.append((f'buffer_store_dwordx4 {vr(g)}, {vL16}, {WS}, {so} offen offset:{1024 * (kst & 3)} sc1', tag))
        return out

    def hreg(self, n, o):
        m, i = divmod(n, 7)
        return (112, 0, 56, 112)[m] + 8 * i + 4 * o

    def hloads(self, m):
        out = []
        for n in range(7 * m, 7 * m + 7):
            dl, ks = self.kstep_of(n)
            for o in range(2):
                base = ((sH0, sH1), (sH03, sH13))[dl][o]
                out.append(f's_add_u32 {sC}, {base}, {ks * 1024}\n'
                           f'buffer_load_dwordx4 {vr(self.hreg(n, o))}, v242, {WS}, {sC} offen sc1')
        return out

    def gemm1(self, L):
        a = self.a
        LB = L * LSTRIDE
        ring = 224
        AHEAD = self.opt.get('ahead', 4)
        seq = []
        for f in range(28):
            for t in range(4):
                seq.append((t, f))
        for t in range(4):
            seq.append((t, 'c'))
        for t in range(4, 8):
            for f in range(28):
                seq.append((t, f))
            seq.append((t, 'c'))
        N = len(seq)
        chunk = lambda t, f: (t >> 2) * 28 + f
        areg = {t: 243 + (t & 3 if t < 4 else (t & 1)) for t in range(8)}
        state = {}

        def rd(i):
            t, f = seq[i]
            base = ring + 4 * (i % 8)
            if f == 'c':
                a(f'ds_read_b64 {ar(base, 2)}, {vL16} offset:{(t >> 1) * 1024 + (t & 1) * 8}')
                return
            addr = SL0 + self.slot(chunk(t, f)) * 4096
            b = addr >> 16
            r = areg[t]
            x, cb = state[r]
            if x != (t & 3):
                a(f'v_xor_b32 v{r}, {32 * (x ^ (t & 3))}, v{r}')
            if cb != b:
                a(f'v_add_u32 v{r}, {((b - cb) << 16) & 0xffffffff}, v{r}')
            state[r] = (t & 3, b)
            for jq in range(2):
                a(f'ds_read_b64_tr_b16 {ar(base + 2 * jq, 2)}, v{r} offset:{(addr & 0xffff) + jq * 512}')

        self.emit(self.tr_base(243, 244))
        a('v_add_u32 v243, 0x10000, v243')
        for t in range(1, 4):
            a(f'v_xor_b32 v{243 + t}, {32 * t}, v243')
        for t in range(4):
            state[243 + t] = (t, 1)
        for i in range(AHEAD):
            rd(i)
        self.emit(self.cvt_ops(6))
        end = self.lab('X1E')
        a(f's_cmp_lg_u32 {sKAP}, 0')
        a(f's_cbranch_scc1 {end}')
        a(f's_lshl_b32 {sA}, {sRT}, 12')
        a(f's_add_u32 {sA}, {sA}, {ULDS}')
        a(f'v_add_u32 v224, {sA}, {vL16}')
        labs = [self.lab('X1') for _ in range(7)]
        for t in range(1, 7):
            a(f's_cmp_eq_u32 {sCG}, {t}')
            a(f's_cbranch_scc1 {labs[t]}')
        for t in range(7):
            a.label(labs[t])
            for q in range(4):
                a(f'ds_write_b128 v224, {vr(16 * t + 4 * q)} offset:{1024 * q}')
            if t < 6:
                a(f's_branch {end}')
        a.label(end)
        a('s_waitcnt lgkmcnt(0)')
        self.stamp(f'N{L}')

        fill = [[] for _ in range(N + 1)]

        def spread(items, g0, g1):
            for i, x in enumerate(items):
                fill[g0 + i * (g1 - g0) // len(items)].append(x)

        early = self.stat_ops(6)
        early += ['v_add_f32 v248, v248, v249',
                  'v_add_f32 v250, v250, v254',
                  'v_permlane32_swap_b32 v248, v250',
                  'v_add_f32 v248, v248, v250',
                  f'v_mul_f32 v248, {fl(1 / 448)}, v248',
                  'v_mov_b32 v250, v248',
                  'v_permlane32_swap_b32 v248, v250',
                  'v_fma_f32 v250, -v248, v248, v250',
                  'v_max_f32 v250, 0, v250',
                  f'v_add_f32 {vIR2}, 0x3727c5ac, v250',
                  f'v_rsq_f32 {vNRL}, {vIR2}',
                  'v_cvt_pk_bf16_f32 v249, -v248, -v248',
                  f'v_mul_f32 {vNRL}, 0xbfb8aa3b, {vNRL}',
                  'v_lshlrev_b32 v250, 16, v249',
                  'v_sub_f32 v250, -v248, v250',
                  f'v_cndmask_b32_e64 v248, 0, v249, {MASKLO}',
                  'v_cvt_pk_bf16_f32 v249, v250, v250',
                  'v_mov_b32 v250, 0',
                  f'v_cndmask_b32_e64 v249, 0, v249, {MASKLO}']
        if L == 0:
            early.insert(0, 'v_mov_b32 v239, v251')
        early.append('v_mov_b32 v251, 0')
        early += [f's_mul_i32 {sHS}, {sT1}, 112\ns_lshl_b32 {sA}, {sJ}, 3\ns_add_u32 {sHS}, {sHS}, {sA}',
                  f's_lshl_b32 {sHS}, {sHS}, 10\ns_add_u32 {sHS}, {sHS}, {LB + HOFF}\ns_add_u32 {sHS2}, {sHS}, 4096',
                  f's_lshl_b32 {sFC}, {sT1}, 6\ns_add_u32 {sFC}, {sFC}, {sJ}',
                  f's_lshl_b32 {sFC}, {sFC}, 7\ns_add_u32 {sFC}, {sFC}, {LB + FC}\ns_add_u32 s99, {sFC}, 4096',
                  f's_mul_i32 {sH0}, {sT1E}, {112 * 1024}\ns_add_u32 {sH0}, {sH0}, {LB + HOFF}',
                  f's_xor_b32 {sA}, {sT1E}, 32\ns_mul_i32 {sH1}, {sA}, {112 * 1024}\ns_add_u32 {sH1}, {sH1}, {LB + HOFF}',
                  f's_lshl_b32 {sA}, {sDEL}, 10\ns_add_u32 {sH03}, {sH0}, {sA}\ns_add_u32 {sH13}, {sH1}, {sA}',
                  f's_mov_b32 s97, {LB + FC}\ns_mov_b32 s98, {LB + FC + 4096}']
        spread(early, 0, 48)
        if L == 0:
            cs = [f'v_and_b32 v238, 31, {vLANE}',
                  'v_lshlrev_b32 v238, 3, v238',
                  f'v_lshrrev_b32 v224, 5, {vLANE}',
                  'v_mul_u32_u24 v224, 1792, v224',
                  'v_add_u32 v238, v238, v224',
                  f's_lshl_b32 s92, {sJ}, 2\ns_add_u32 s92, s92, {sW}',
                  f's_lshl_b32 s92, s92, 12\ns_add_u32 s92, s92, {CSOFF}']
            cs += [f'buffer_load_dwordx2 v[{224 + 2 * i}:{225 + 2 * i}], v238, {WS}, s92 offen offset:{256 * i} sc1' for i in range(7)]
            spread(cs, 48, 62)
            cs = []
            for i in range(1, 7):
                cs += [f'v_add_f32 v224, v224, v{224 + 2 * i}', f'v_add_f32 v225, v225, v{225 + 2 * i}']
            cs += ['v_mov_b32 v226, v224', 'v_mov_b32 v227, v225',
                   'v_permlane32_swap_b32 v224, v226', 'v_permlane32_swap_b32 v225, v227',
                   'v_add_f32 v224, v224, v226', 'v_add_f32 v225, v225, v227',
                   'v_cvt_pk_bf16_f32 v226, v224, v225',
                   'v_lshlrev_b32 v227, 16, v226', f'v_and_b32 v226, {sHIMASK}, v226',
                   'v_sub_f32 v227, v224, v227', 'v_sub_f32 v226, v225, v226',
                   'v_cvt_pk_bf16_f32 v228, v224, v227', 'v_cvt_pk_bf16_f32 v230, v225, v226',
                   'v_mov_b32 v229, v228', 'v_mov_b32 v231, v230',
                   f'v_add_u32 v238, {sW1K}, {vL16}',
                   'ds_write_b128 v238, v[228:231]']
            spread(cs, 84, 100)
            wl = self.wd_loads('v239')[self.nw_done:]
            spread(wl, 58, 200)
        dma_at = {}
        for q in range(NHEAD, NSLOT):
            dma_at[q] = 2 * (q - NHEAD) + 1
        for q in range(NSLOT, 56):
            dma_at[q] = 61 + 2 * (q - NSLOT) + (0 if q < 51 else 4)
        bars = [12, 28, 44, 60, 76, 92, 108, 124]
        for q, g in dma_at.items():
            fill[g].append(self.w_dma(q))
        first_rd, last_mm = {}, {}
        for i, (t, f) in enumerate(seq):
            if f != 'c':
                first_rd.setdefault(chunk(t, f), i - AHEAD)
                last_mm[chunk(t, f)] = i
        barw = {}
        for q, g in dma_at.items():
            bs = [b for b in bars if g < b <= first_rd[q]]
            assert bs, ('no landing barrier', q)
            b = max(bs)
            if b not in barw or dma_at[barw[b]] < g:
                barw[b] = q
            if q >= NSLOT:
                assert any(last_mm[q - NSLOT] < b <= g for b in bars), ('slot reuse', q)
        g0 = 118
        per = (N - g0) / 7
        for t in range(7):
            lo, hi = int(g0 + t * per), int(g0 + (t + 1) * per)
            done = [i for i, x in enumerate(seq) if x == (t, 'c')][0]
            assert lo > done + 1, (t, lo, done)
            spread(self.swiglu(112 + 16 * t, t, f'h{t}'), lo, hi)
            if t in (1, 3):
                fg = hi + self.opt.get('drain_gaps', 24)
                tmp = 126 if t == 1 else 174
                fill[fg - 1].append(self.flag_prep(tmp))
                fill[fg].append(lambda t=t: a.wait_vm(f'h{t}'))
                fill[fg].append(self.flag_store(sFC, tmp, 2048 * (t >> 1)))
        pa = [f'v_bfe_u32 v245, {vLANE}, 4, 1',
              'v_lshlrev_b32 v245, 5, v245',
              f'v_add_u32 v245, {sS2}, v245',
              f'v_and_b32 v246, 15, {vLANE}',
              'v_min_u32 v246, 13, v246',
              'v_lshl_add_u32 v245, v245, 6, v246',
              'v_lshlrev_b32 v245, 7, v245',
              f's_lshl_b32 {sA}, {sW}, 13',
              f'v_add_u32 v242, {sA}, {vL16}',
              f's_lshl_b32 {sA}, {sRT}, 12\ns_lshl_b32 {sB}, {sKAP}, 10\ns_add_u32 {sA}, {sA}, {sB}\ns_add_u32 {sA}, {sA}, {ULDS}',
              f'v_add_u32 v246, {sA}, {vL16}']
        spread(pa, 110, 118)
        p0g = self.opt.get('p0g', 196)
        fill[p0g].append(self.poll_issue('v245', 's97', 240, 'pC0'))
        fill[p0g + 12].append(lambda: self.poll_check('pC0'))
        spread(self.hloads(0), p0g + 12, N - 4)
        fill[N - 3].append(self.poll_issue('v245', 's97', 240, 'pC1', 2048))
        for i in range(N):
            t, f = seq[i]
            if i in bars:
                if i in barw:
                    a.wait_vm(f'w{barw[i]}')
                a('s_barrier')
            acc = vr(112 + 16 * t, 16)
            b = vr(4 * f) if f != 'c' else vr(MU)
            a(f'{MF} {acc}, {ar(ring + 4 * (i % 8))}, {b}, {"0" if f == 0 else acc}')
            if i + AHEAD < N:
                rd(i + AHEAD)
            self.emit(fill[i])
            if i == 115:
                self.stamp(f'G1{L}')
        a('s_barrier')
        self.stamp(f'G{L}')

    def p2b(self, L):
        a = self.a

        def mm(n):
            out = []
            for o in (1, 0):
                for ct in range(2):
                    acc = vr(176 + 16 * ct, 16) if o == 0 else ar(224 + 16 * ct, 16)
                    c = '0' if (n == 0 and o == 1) else acc
                    out.append(f'{MF} {acc}, {ar(8 * n + 4 * ct)}, {vr(self.hreg(n, o))}, {c}')
            return out

        def run(m, fill):
            ms = [x for n in range(7 * m, 7 * m + 7) for x in mm(n)]
            for i, x in enumerate(ms):
                a(x)
                self.emit(fill.get(i, []))

        a(f'ds_read_b128 {vr(216)}, v246')
        a(f'ds_read_b128 {vr(220)}, v246 offset:2048')
        a(self.flag_prep(168))
        a.wait_vm('h5')
        a(self.flag_store('s99', 168))
        self.emit(self.swiglu(112 + 16 * 7, 7, 'h7'))
        self.poll_check('pC1')
        self.emit(self.hloads(1))
        for ct in range(2):
            for i in range(4):
                a(f'v_lshlrev_b32 v{176 + 16 * ct + 2 * i}, 16, v{216 + 4 * ct + i}')
                a(f'v_and_b32 v{177 + 16 * ct + 2 * i}, {sHIMASK}, v{216 + 4 * ct + i}')
            for i in range(8):
                a(f'v_mov_b32 v{184 + 16 * ct + i}, 0')
        self.stamp(f'H{L}')
        f7 = self.opt.get('f7', 16)
        run(0, {f7: [lambda: a.wait_vm('h7'), self.flag_store('s99', 168, 2048),
                     self.poll_issue('v245', 's98', 240, 'pC2')]})
        self.poll_check('pC2')
        hl = self.hloads(2)
        fills = {i: [hl[i]] for i in range(14)}
        fills[self.opt.get('p3g', 20)] = [self.poll_issue('v245', 's98', 240, 'pC3', 2048)]
        run(1, fills)
        self.stamp(f'C2{L}')
        self.poll_check('pC3')
        self.stamp(f'C{L}')
        hl = self.hloads(3)
        fills = {i: [hl[i]] for i in range(14)}
        run(2, fills)
        ex = []
        for X in (1, 3, 2):
            ex += [f's_xor_b32 {sA}, {sW}, {X}\ns_mul_i32 {sA}, {sA}, 28672', f'v_add_u32 v{207 + X}, {sA}, {vL16}']
        ex.append(f'v_add_u32 v211, {sT1B}, {vL16}')
        if L == 0:
            ex += self.setup_w_addr(212)
            ex += [self.w_dma(q) for q in range(NHEAD)]
        fills = {}
        for i, x in enumerate(ex):
            fills.setdefault(i * 26 // len(ex), []).append(x)
        run(3, fills)
        self.stamp(f'P{L}')
        for X in (1, 3, 2):
            for ct in range(2):
                for h in range(2):
                    r = 16 * ct + 4 * h + (8 if X & 2 else 0)
                    src = ar(224 + r) if X & 1 else vr(176 + r)
                    a(f'ds_write_b128 v{207 + X}, {src} offset:{SL0 + (X - 1) * 4096 + ct * 2048 + h * 1024}')
        a('s_waitcnt lgkmcnt(0)')
        a('s_barrier')
        for X in range(3):
            for k in range(4):
                a(f'ds_read_b128 {vr(112 + 16 * X + 4 * k)}, v211 offset:{X * 4096 + k * 1024}')
        for X in range(3):
            for i in range(16):
                d = 176 + 16 * (i >> 3) + (i & 7)
                a(f'v_add_f32 v{d}, v{d}, v{112 + 16 * X + i}')

    def final(self, D, M):
        a = self.a
        self.row_offsets('v1', 'v2', 'v3', 'v12', sA, sB)
        for i in range(4):
            a(f'v_cvt_pk_bf16_f32 v{4 + i}, v{D + 2 * i}, v{D + 2 * i + 1}')
        a(f'buffer_store_dwordx4 v[4:7], v1, {SOUT}, 0 offen')
        for i in range(3):
            a(f'v_cvt_pk_bf16_f32 v{8 + i}, v{M + 6 - 2 * i}, v{M + 5 - 2 * i}')
        a(f'v_cvt_pk_bf16_f32 v11, v{M + 7}, v{M}')
        a(f'buffer_store_dwordx3 v[8:10], v2, {SOUT}, 0 offen offset:4')
        a(f'buffer_store_short v11, v2, {SOUT}, 0 offen offset:2')
        a(f'buffer_store_short_d16_hi v11, v3, {SOUT}, 0 offen')

    def build(self):
        a = self.a
        self.init()
        self.stamp('start')
        self.emit(self.tables() + self.wd_addr() + self.colsum_addr() + self.pollA_addr() + self.p3_addr(0))
        self.stamp('tab')
        self.p0_unpack(200, 208)
        self.stamp('x')
        for L in range(2):
            if L == 0:
                self.estage(L, 200, 208, 124)
                a('v_mov_b32 v13, 0')
                ld = f'global_load_dwordx2 v[14:15], v13, {DBG} sc1'
                a(ld)
                self.wd_prep()
                self.colsum_produce()
                slow, back = self.lab('SLOW'), self.lab('BACK')
                a('v_cmp_eq_u32 vcc, 0, v14')
                a(f's_cbranch_vccnz {slow}')
                a.label(back)
                self.stubs.append(f'''{slow}:
  {ld}
  s_add_u32 {sSPIN}, {sSPIN}, 1
  s_cmp_gt_u32 {sSPIN}, {SPIN_LIMIT}
  s_cbranch_scc1 L_end
  s_waitcnt vmcnt(0)
  v_cmp_eq_u32 vcc, 0, v14
  s_nop 4
  s_cbranch_vccnz {slow}
  s_branch {back}
''')
                a(self.flag_store(sFLA, 14))
                a('v_readfirstlane_b32 s38, v14')
                a('v_readfirstlane_b32 s39, v15')
                self.stamp(f'E{L}')
                a(f's_lshl_b32 {sA}, s2, 7')
                a(f's_lshl_b32 {sB}, {sW}, 15')
                a(f's_add_u32 {sA}, {sA}, {sB}')
                a(f's_add_u32 {sA}, {sA}, {FW}')
                a('s_waitcnt vmcnt(1)')
                a('s_barrier')
                a(self.flag_store(sA, 14))
            else:
                self.estage(L, 176, 192, 56)
                tb = self.tables() + self.pollA_addr() + self.p3_addr(L)
                n1 = self.opt.get('tb1', 130)
                a(self.flag_prep(14))
                self.emit(tb[:n1])
                a.wait_vm('est')
                a(self.flag_store(sFLA, 14))
                self.stamp(f'E{L}')
                self.emit(tb[n1:])
                self.stamp(f'tab{L}')
            if self.stop == f'E{L}':
                break
            self.p3(L)
            self.stamp(f'T{L}')
            self.pre_b(L)
            if self.stop == f'T{L}':
                break
            self.stage2(L)
            self.stamp(f'S{L}')
            self.gemm1(L)
            self.p2b(L)
            self.stamp(f'R{L}')
            if self.stop == f'H{L}':
                break
        else:
            self.final(176, 192)
        a.label('L_end')
        if self.stamps:
            self.stamp('end')
            a(f's_lshl_b32 {sA}, s2, 2')
            a(f's_add_u32 {sA}, {sA}, {sW}')
            a(f's_lshl_b32 {sA}, {sA}, 8')
            a(f's_add_u32 {sA}, {sA}, {STAMPOFF}')
            a(f'v_lshlrev_b32 v1, 2, {vLANE}')
            a(f'buffer_store_dword {vSTAMP}, v1, {WS}, {sA} offen')
        a.label('L_exit')
        a('s_endpgm')
        return a.finalize(True) + ''.join(self.stubs) + 'L_code_end:\n'


def header():
    src = open('interleave_layers__spectral_fnet__swiglu_ffn__prompt.s.ref').read().split('\n')
    return '\n'.join(l for l in src if l.startswith(';') and '@launch' not in l) + '\n'


def make(path, dev=False, **kw):
    g = Gen(**kw)
    body = g.build()
    if dev:
        ll = f'; @launch kernel={NAME} grid=({NWG},1,1) block=(256,1,1) lds=163840'
    else:
        ll = f'; @launch grid=({NWG},1,1) block=(256,1,1) lds=163840'
    open(path, 'w').write(kernel_file(body, NAME, ll, header()))
    return g


if __name__ == '__main__':
    make(sys.argv[1] if len(sys.argv) > 1 else 'out.s')
```
